```python
import torch

def _softmax(x, axis=-1):
    return torch.softmax(x, dim=axis)
def _gelu(x):
    return torch.nn.functional.gelu(x, approximate="tanh")
def _silu(x):
    return torch.nn.functional.silu(x)
def _sigmoid(x):
    return torch.sigmoid(x)
def _layernorm(x, axis=-1, eps=1e-5):
    m = x.mean(dim=axis, keepdim=True)
    v = x.var(dim=axis, keepdim=True, unbiased=False)
    return (x - m) / torch.sqrt(v + eps)
def _scatter_add(tgt, idx, src, axis=0):
    return tgt.clone().index_add_(axis, idx, src)
def _segment_sum(src, seg, n):
    out = torch.zeros((n,) + src.shape[1:], dtype=src.dtype)
    return out.index_add_(0, seg, src)
def _pad(x, pw):
    flat = tuple(v for pair in reversed(pw) for v in pair)
    return torch.nn.functional.pad(x, flat)

kernel_name = 'recurrent_scan__sliding_local_dilated__geglu_ffn__prompt'

def setup_inputs():

    _w = (lambda a: (lambda t: t.to(torch.bfloat16) if t.is_floating_point() else t)(torch.as_tensor(a)))
    def _A_setup():
        B, S, D = 1, 2048, 576
        return {
            "x": _w((lambda *s: torch.randn(*s, dtype=torch.bfloat16) * 0.05)(B, S, D)),
            "wqkv": _w((lambda *s: torch.randn(*s, dtype=torch.bfloat16) * 0.05)(D, 3 * D)),
            "wo": _w((lambda *s: torch.randn(*s, dtype=torch.bfloat16) * 0.05)(D, D)),
        }
    _A_in = _A_setup()

    def _B_setup():
        B, S, D, F = 1, 2048, 576, 4608
        return {
            "x": _w((lambda *s: torch.randn(*s, dtype=torch.bfloat16) * 0.05)(B, S, D)),
            "w_gate": _w((lambda *s: torch.randn(*s, dtype=torch.bfloat16) * 0.05)(D, F)),
            "w_up": _w((lambda *s: torch.randn(*s, dtype=torch.bfloat16) * 0.05)(D, F)),
            "w_down": _w((lambda *s: torch.randn(*s, dtype=torch.bfloat16) * 0.05)(F, D)),
        }
    _B_in = _B_setup()

    return {
        "A_x": _A_in["x"],
        "A_wqkv": _A_in["wqkv"],
        "A_wo": _A_in["wo"],
        "B_x": _B_in["x"],
        "B_w_gate": _B_in["w_gate"],
        "B_w_up": _B_in["w_up"],
        "B_w_down": _B_in["w_down"],
    }

def reference(A_x, A_wqkv, A_wo, B_x, B_w_gate, B_w_up, B_w_down):
    def _A_ref(x, wqkv, wo):
        B, S, D = x.shape
        H = 32; Dh = D // H
        W, dil = 8, 2
        qkv = (lambda x, *d: x.permute(*d))((x @ wqkv).reshape(B, S, 3, H, Dh), 2, 0, 3, 1, 4)
        q, k, v = qkv[0], qkv[1], qkv[2]
        scale = Dh ** -0.5
        pos = torch.arange(S)
        off = torch.arange(W) * dil
        idx = pos[:, None] - off[None, :]
        mask = idx >= 0
        idx_c = torch.where(mask, idx, 0).reshape(-1)
        kg = k[:, :, idx_c, :].reshape(B, H, S, W, Dh)
        vg = v[:, :, idx_c, :].reshape(B, H, S, W, Dh)
        logits = torch.einsum("bhsd,bhswd->bhsw", q, kg) * scale
        logits = torch.where(mask[None, None, :, :], logits, -1e9)
        attn = _softmax(logits, axis=-1)
        o = torch.einsum("bhsw,bhswd->bhsd", attn, vg)
        return (lambda x, *d: x.permute(*d))(o, 0, 2, 1, 3).reshape(B, S, D) @ wo

    def _B_ref(x, w_gate, w_up, w_down):
        return (_gelu(x @ w_gate) * (x @ w_up)) @ w_down

    x = A_x
    xn = _layernorm(x, axis=-1)
    s = _A_ref(xn, A_wqkv, A_wo)
    g = _silu(_B_ref(xn, B_w_gate, B_w_up, B_w_down))
    return x + s * g
```

```python
import struct, math, sys, os
import layout as L

def f2u(x):
    return struct.unpack("<I", struct.pack("<f", x))[0]

class A:
    def __init__(self):
        self.l = []
    def e(self, s):
        self.l.append("    " + s)
    def lab(self, s):
        self.l.append(s + ":")
    def c(self, s):
        self.l.append("    ; " + s)
    def text(self):
        return "\n".join(self.l) + "\n"

def vr(b, n):
    return f"v[{b}:{b+n-1}]"
def sr(b, n):
    return f"s[{b}:{b+n-1}]"

def srd(a, d, plo, nbytes, add=None):
    if add:
        a.e(f"s_add_u32 s{d}, s{plo}, {add}")
        a.e(f"s_addc_u32 s{d+1}, s{plo+1}, 0")
    else:
        a.e(f"s_mov_b32 s{d}, s{plo}")
        a.e(f"s_mov_b32 s{d+1}, s{plo+1}")
    a.e(f"s_mov_b32 s{d+2}, {nbytes}")
    a.e(f"s_mov_b32 s{d+3}, 0x00020000")

def kheader(a, name):
    a.l.append(f".globl {name}\n.p2align 8\n.type {name},@function\n{name}:")

def kdesc(name, nv, ns):
    acc = (nv + 3) // 4 * 4
    return f""".p2align 6
.amdhsa_kernel {name}
  .amdhsa_next_free_vgpr {nv}
  .amdhsa_next_free_sgpr {ns}
  .amdhsa_accum_offset {acc}
  .amdhsa_group_segment_fixed_size 0
  .amdhsa_kernarg_size 80
  .amdhsa_user_sgpr_count 2
  .amdhsa_user_sgpr_kernarg_segment_ptr 1
  .amdhsa_system_sgpr_workgroup_id_x 1
.end_amdhsa_kernel
"""


GC0 = -2.0 * math.sqrt(2.0 / math.pi) * math.log2(math.e)
GC1 = GC0 * 0.044715

class VmTracker:
    def __init__(self, a):
        self.a = a; self.n = 0; self.tags = {}; self.done = 0
    def issue(self, txt, tag):
        self.a.e(txt)
        self.n += 1
        if tag is not None: self.tags[tag] = self.n
    def wait_tag(self, tag):
        if tag not in self.tags: return
        k = self.tags[tag]
        if k <= self.done: return
        cnt = min(self.n - k, 63)
        self.a.e(f"s_waitcnt vmcnt({cnt})")
        self.done = self.n - cnt

class LgkmTracker:
    def __init__(self, a):
        self.a = a; self.q = []
    def issue(self, txt, tag):
        self.a.e(txt)
        self.q.append(tag)
    def wait_tag(self, tag):
        if tag not in self.q: return
        k = len(self.q) - 1 - self.q[::-1].index(tag)
        k = self.q.index(tag)
        cnt = len(self.q) - 1 - k
        assert cnt <= 15, cnt
        self.a.e(f"s_waitcnt lgkmcnt({cnt})")
        self.q = self.q[k+1:]
    def clear(self): self.q = []
    def snapshot(self): return list(self.q)
    def restore(self, s): self.q = list(s)
```

```python
from gen_common import *
K0_GRID = 256 + 162
def gen_k0():
    a = A()
    kheader(a, "ln_kernel")
    a.e(f"s_cmp_ge_u32 s2, {K0_GRID}")
    a.e("s_cbranch_scc1 K0_done")
    a.e("s_load_dwordx2 s[4:5], s[0:1], 0")
    a.e("s_load_dwordx2 s[6:7], s[0:1], 16")
    a.e("s_load_dwordx2 s[8:9], s[0:1], 72")
    a.e("v_and_b32 v1, 63, v0")
    a.e("v_lshrrev_b32 v2, 6, v0")
    a.e("s_waitcnt lgkmcnt(0)")
    srd(a, 12, 4, 2048*1152)
    srd(a, 16, 6, 576*1152)
    srd(a, 20, 8, 2048*1152, add=L.XN)
    srd(a, 24, 8, 576*1152, add=L.WOF)
    a.e("s_cmp_ge_u32 s2, 256")
    a.e("s_cbranch_scc1 K0_wo")
    a.e("s_lshl_b32 s3, s2, 3")
    a.e("v_lshlrev_b32 v3, 1, v2")
    a.e("v_lshrrev_b32 v4, 5, v1")
    a.e("v_add3_u32 v3, v3, v4, s3")
    a.e("v_and_b32 v4, 31, v1")
    a.e("v_mul_u32_u24 v5, 1152, v3")
    a.e("v_lshl_add_u32 v5, v4, 4, v5")
    a.e("v_lshrrev_b32 v6, 5, v3")
    a.e("v_mul_u32_u24 v6, 36864, v6")
    a.e("v_and_b32 v7, 31, v3")
    a.e("v_lshl_add_u32 v6, v7, 4, v6")
    a.e("v_lshl_add_u32 v6, v4, 9, v6")
    a.e("v_mov_b32 v8, 0")
    a.e("v_mov_b32 v9, 0")
    a.e("v_cmp_gt_u32 vcc, 24, v4")
    a.e("s_and_saveexec_b64 s[28:29], vcc")
    for i in range(3):
        a.e(f"buffer_load_dwordx4 {vr(12+4*i,4)}, v5, s[12:15], 0 offen offset:{384*i}")
    a.e("s_waitcnt vmcnt(0)")
    for i in range(12):
        a.e(f"v_lshlrev_b32 v{32+2*i}, 16, v{12+i}")
        a.e(f"v_and_b32 v{33+2*i}, 0xffff0000, v{12+i}")
    a.e("v_add_f32 v8, v32, v33")
    for i in range(2, 24):
        a.e(f"v_add_f32 v8, v8, v{32+i}")
    a.e("s_mov_b64 exec, s[28:29]")
    def reduce32(r):
        for m in ["quad_perm:[1,0,3,2]", "quad_perm:[2,3,0,1]", "row_half_mirror", "row_mirror"]:
            a.e("s_nop 1")
            a.e(f"v_add_f32_dpp v{r}, v{r}, v{r} {m} row_mask:0xf bank_mask:0xf")
        a.e("s_nop 1")
        a.e(f"ds_swizzle_b32 v10, v{r} offset:0x401F")
        a.e("s_waitcnt lgkmcnt(0)")
        a.e(f"v_add_f32 v{r}, v{r}, v10")
    a.e("s_nop 4")
    reduce32(8)
    a.e(f"v_mul_f32 v8, 0x{f2u(1.0/576):08x}, v8")
    a.e("s_and_saveexec_b64 s[28:29], vcc")
    for i in range(24):
        a.e(f"v_sub_f32 v{56+i}, v{32+i}, v8")
    for i in range(24):
        a.e(f"v_fmac_f32 v9, v{56+i}, v{56+i}")
    a.e("s_mov_b64 exec, s[28:29]")
    a.e("s_nop 4")
    reduce32(9)
    a.e(f"v_mul_f32 v9, 0x{f2u(1.0/576):08x}, v9")
    a.e("v_cvt_pk_bf16_f32 v10, v8, v9")
    a.e("v_lshlrev_b32 v8, 16, v10")
    a.e("v_and_b32 v9, 0xffff0000, v10")
    a.e(f"v_add_f32 v9, 0x{f2u(1e-5):08x}, v9")
    a.e("v_cvt_pk_bf16_f32 v9, v9, v9")
    a.e("v_lshlrev_b32 v9, 16, v9")
    a.e("v_sqrt_f32 v9, v9")
    a.e("s_nop 0")
    a.e("v_cvt_pk_bf16_f32 v9, v9, v9")
    a.e("v_lshlrev_b32 v9, 16, v9")
    a.e("v_rcp_f32 v11, v9")
    a.e("s_and_saveexec_b64 s[28:29], vcc")
    for i in range(24):
        a.e(f"v_sub_f32 v{32+i}, v{32+i}, v8")
    for i in range(12):
        a.e(f"v_cvt_pk_bf16_f32 v{12+i}, v{32+2*i}, v{33+2*i}")
    for i in range(12):
        a.e(f"v_lshlrev_b32 v{32+2*i}, 16, v{12+i}")
        a.e(f"v_and_b32 v{33+2*i}, 0xffff0000, v{12+i}")
    for i in range(24):
        a.e(f"v_mul_f32 v{56+i}, v{32+i}, v11")
    for i in range(24):
        a.e(f"v_fma_f32 v{32+i}, -v{56+i}, v9, v{32+i}")
    for i in range(24):
        a.e(f"v_fmac_f32 v{56+i}, v{32+i}, v11")
    for i in range(12):
        a.e(f"v_cvt_pk_bf16_f32 v{12+i}, v{56+2*i}, v{57+2*i}")
    a.e("s_mov_b32 s30, 12288")
    a.e("s_mov_b32 s31, 24576")
    a.e(f"buffer_store_dwordx4 {vr(12,4)}, v6, s[20:23], 0 offen")
    a.e(f"buffer_store_dwordx4 {vr(16,4)}, v6, s[20:23], s30 offen")
    a.e(f"buffer_store_dwordx4 {vr(20,4)}, v6, s[20:23], s31 offen")
    a.e("s_endpgm")
    a.lab("K0_wo")
    a.e("s_nop 0")
    a.e("v_readfirstlane_b32 s3, v2")
    a.e("s_sub_u32 s28, s2, 256")
    a.e("s_lshl_b32 s28, s28, 2")
    a.e("s_add_u32 s28, s28, s3")
    a.e("s_mul_hi_u32 s29, s28, 0x0E38E38F")
    a.e("s_mul_i32 s30, s29, 18")
    a.e("s_sub_u32 s30, s28, s30")
    a.e("s_mul_i32 s30, s30, 36864")
    a.e("s_lshl_b32 s29, s29, 5")
    a.e("s_add_u32 s30, s30, s29")
    a.e("v_lshrrev_b32 v3, 4, v1")
    a.e("v_mul_u32_u24 v3, 9216, v3")
    a.e("v_and_b32 v4, 15, v1")
    a.e("v_lshl_add_u32 v3, v4, 1, v3")
    a.e("v_add_u32 v4, 4608, v3")
    for j in range(8):
        vo = "v3" if j < 4 else "v4"
        a.e(f"buffer_load_ushort v{16+j}, {vo}, s[16:19], s30 offen offset:{(j%4)*1152}")
    a.e("s_lshl_b32 s28, s28, 10")
    a.e("v_lshlrev_b32 v5, 4, v1")
    a.e("s_waitcnt vmcnt(0)")
    for j in range(4):
        a.e(f"v_lshl_or_b32 v{8+j}, v{17+2*j}, 16, v{16+2*j}")
    a.e(f"buffer_store_dwordx4 {vr(8,4)}, v5, s[24:27], s28 offen")
    a.lab("K0_done")
    a.e("s_endpgm")
    return a.text(), kdesc("ln_kernel", 80, 40)
```

```python
from gen_common import *

def gen_k1(OPT=set()):
    a = A()
    kheader(a, "gemm1_kernel")
    ACC = [[[0, 16], [32, 48]], [[64, 80], [96, 112]]]
    XV = 128
    WF = 160
    T = [192, 200]
    vLane = 208
    vRd = [[209, 210], [211, 212]]
    vDmaF, vDmaQ, vDma, vHst, vQst, vC1, vTmp, vTmp2, vStamp = 213, 214, 215, 216, 217, 218, 219, 220, 221
    NVA = 224
    def xfrag(rt, s):
        idx = rt * 36 + s
        if idx < 64: return f"a[{4*idx}:{4*idx+3}]"
        return vr(XV + 4 * (idx - 64), 4)
    STG = 24576
    sW, sQ, sXN, sH, sQKV, sF = 12, 16, 20, 24, 28, 32
    (sw, smt, scg, sNF, sfb0, sQ1G, sQ1U, sQ2G, sQ2U, sQ1w, sQ2w, sNQ, sHoff, sHoff2, sQrow, st0, st1, st2, sLdsW, sImg,
     sQoG, sQoU, sQoG2, sQoU2, sFB, sSrc, sStr, sLoop, sPar) = range(36, 65)
    sM = 66

    a.e("s_cmp_ge_u32 s2, 256")
    a.e("s_cbranch_scc1 K1_done")
    if 'stamp' in OPT:
        a.e("s_memtime s[70:71]")
        a.e("s_mov_b32 s79, 0")
    def stamp():
        if 'stamp' in OPT:
            a.e("s_memtime s[72:73]")
            a.e("s_waitcnt lgkmcnt(0)")
            lt.clear()
            a.e("s_sub_u32 s72, s72, s70")
            a.e("s_mov_b32 m0, s79")
            a.e("s_nop 0")
            a.e(f"v_writelane_b32 v{vStamp}, s72, m0")
            a.e("s_add_u32 s79, s79, 1")
    def dump():
        if 'stamp' in OPT:
            stamp()
            a.e(f"s_add_u32 s76, s10, {L.DBG}"); a.e("s_addc_u32 s77, s11, 0"); a.e("s_mov_b32 s78, 0x100000"); a.e("s_mov_b32 s79, 0x00020000")
            a.e("s_lshl_b32 s74, s2, 3")
            a.e(f"s_add_u32 s74, s74, s{sw}")
            a.e("s_lshl_b32 s74, s74, 8")
            a.e(f"v_lshlrev_b32 v{vTmp}, 2, v{vLane}")
            a.e(f"buffer_store_dword v{vStamp}, v{vTmp}, s[76:79], s74 offen")
    a.e("s_load_dwordx2 s[4:5], s[0:1], 8")
    a.e("s_load_dwordx2 s[6:7], s[0:1], 32")
    a.e("s_load_dwordx2 s[8:9], s[0:1], 40")
    a.e("s_load_dwordx2 s[10:11], s[0:1], 72")
    a.e(f"v_and_b32 v{vLane}, 63, v0")
    a.e(f"v_lshrrev_b32 v{vTmp}, 6, v0")
    a.e("s_nop 0")
    a.e(f"v_readfirstlane_b32 s{sw}, v{vTmp}")
    a.e(f"s_and_b32 s{st0}, s2, 7")
    a.e(f"s_lshr_b32 s{st1}, s2, 3")
    a.e(f"s_and_b32 s{smt}, s{st1}, 7")
    a.e(f"s_lshr_b32 s{st1}, s{st1}, 3")
    a.e(f"s_lshl_b32 s{scg}, s{st0}, 2")
    a.e(f"s_add_u32 s{scg}, s{scg}, s{st1}")
    a.e(f"s_lshr_b32 s{st0}, s{scg}, 1")
    a.e(f"s_and_b32 s{st1}, s{scg}, 1")
    a.e(f"s_mul_i32 s{sfb0}, s{st0}, 9")
    a.e(f"s_mul_i32 s{st2}, s{st1}, 5")
    a.e(f"s_add_u32 s{sfb0}, s{sfb0}, s{st2}")
    a.e(f"s_sub_u32 s{sNF}, 5, s{st1}")
    a.e(f"s_min_u32 s{st2}, s{st0}, 6")
    a.e(f"s_mul_i32 s{sQ1G}, s{st0}, 3")
    a.e(f"s_add_u32 s{sQ1G}, s{sQ1G}, s{st2}")
    a.e(f"s_cmp_lt_u32 s{st0}, 6")
    a.e(f"s_cselect_b32 s{st2}, 3, 2")
    a.e(f"s_cmp_eq_u32 s{st1}, 1")
    a.e(f"s_cselect_b32 s{sNQ}, s{st2}, 1")
    a.e(f"s_cselect_b32 s{st2}, 0, s{st2}")
    a.e(f"s_add_u32 s{sQ1G}, s{sQ1G}, s{st2}")
    a.e(f"s_lshl_b32 s{sQ1G}, s{sQ1G}, 6")
    a.e(f"s_cmp_eq_u32 s{st1}, 1")
    a.e(f"s_cselect_b32 s{st2}, 64, 32")
    a.e(f"s_add_u32 s{sQ1U}, s{sQ1G}, s{st2}")
    a.e(f"s_add_u32 s{sQ2G}, s{sQ1G}, 128")
    a.e(f"s_add_u32 s{sQ2U}, s{sQ2G}, 32")
    a.e(f"s_lshr_b32 s{sImg}, s{sw}, 1")
    a.e(f"s_cmp_eq_u32 s{sImg}, 1")
    a.e(f"s_cselect_b32 s{sQ1w}, s{sQ1U}, s{sQ1G}")
    a.e(f"s_cselect_b32 s{sQ2w}, s{sQ2U}, s{sQ2G}")
    a.e("s_waitcnt lgkmcnt(0)")
    a.e(f"s_cselect_b32 s{sW}, s8, s6")
    a.e(f"s_cselect_b32 s{sW+1}, s9, s7")
    a.e(f"s_mov_b32 s{sW+2}, {576*9216}")
    a.e(f"s_mov_b32 s{sW+3}, 0x00020000")
    srd(a, sQ, 4, 576*3456)
    srd(a, sXN, 10, 2048*1152, add=L.XN)
    srd(a, sH, 10, 2048*9216, add=L.H)
    srd(a, sQKV, 10, 2048*3456, add=L.QKV)
    a.e(f"v_lshrrev_b32 v{vTmp}, 2, v{vLane}")
    a.e(f"v_and_b32 v{vTmp2}, 3, v{vLane}")
    a.e(f"s_lshl_b32 s{st0}, s{sImg}, 1")
    a.e(f"v_xor_b32 v{vTmp2}, s{st0}, v{vTmp2}")
    a.e(f"v_lshlrev_b32 v{vTmp2}, 4, v{vTmp2}")
    a.e(f"v_mul_u32_u24 v{vDmaF}, 9216, v{vTmp}")
    a.e(f"v_add_u32 v{vDmaF}, v{vDmaF}, v{vTmp2}")
    a.e(f"v_mul_u32_u24 v{vDmaQ}, 3456, v{vTmp}")
    a.e(f"v_add_u32 v{vDmaQ}, v{vDmaQ}, v{vTmp2}")
    a.e(f"s_mul_i32 s{sLdsW}, s{sImg}, 12288")
    a.e(f"s_and_b32 s{sPar}, s{sw}, 1")
    a.e(f"s_lshl_b32 s{st1}, s{sPar}, 10")
    a.e(f"s_add_u32 s{sLdsW}, s{sLdsW}, s{st1}")
    a.e(f"s_mov_b32 s{sFB}, -1")

    vt = VmTracker(a)
    lt = LgkmTracker(a)

    def next_fetch():
        ops = []
        ops.append(f"s_add_u32 s{sFB}, s{sFB}, 1")
        ops.append(f"s_cmp_eq_u32 s{sFB}, s{sNF}")
        ops.append(f"s_cselect_b32 s{st0}, s{sQ1w}, s{sQ2w}")
        ops.append(f"s_add_u32 s{st1}, s{sFB}, s{sfb0}")
        ops.append(f"s_lshl_b32 s{st1}, s{st1}, 6")
        ops.append(f"s_cmp_lt_u32 s{sFB}, s{sNF}")
        ops.append(f"s_cselect_b32 s{st0}, s{st1}, s{st0}")
        ops.append(f"s_cselect_b32 s{sF}, s{sW}, s{sQ}")
        ops.append(f"s_cselect_b32 s{sF+1}, s{sW+1}, s{sQ+1}")
        ops.append(f"s_cselect_b32 s{sF+2}, s{sW+2}, s{sQ+2}")
        ops.append(f"s_mov_b32 s{sF+3}, 0x00020000")
        ops.append(f"s_cselect_b32 s{sStr}, 8, 3")
        ops.append(f"s_cselect_b64 s[{sM}:{sM+1}], -1, 0")
        ops.append(f"s_mul_i32 s{sStr}, s{sStr}, 18432")
        ops.append(f"s_mul_i32 s{st1}, s{sStr}, s{sPar}")
        ops.append(f"s_add_u32 s{sSrc}, s{st0}, s{st1}")
        ops.append(f"s_lshl_b32 s{sStr}, s{sStr}, 1")
        ops.append(f"v_cndmask_b32 v{vDma}, v{vDmaQ}, v{vDmaF}, s[{sM}:{sM+1}]")
        return ops

    def dma_piece(slot, i):
        if 'nodma' in OPT: return []
        return [f"s_add_u32 m0, s{sLdsW}, {slot*STG + i*2048}",
                f"s_nop 0",
                ("VM", f"buffer_load_dwordx4 v{vDma}, {sr(sF,4)}, s{sSrc} offen lds", ("dma", slot)),
                f"s_add_u32 s{sSrc}, s{sSrc}, s{sStr}"]

    def emit(o):
        if isinstance(o, tuple):
            if o[0] == "VM":
                vt.issue(o[1], o[2])
        else:
            a.e(o)

    def xload(s):
        ops = []
        for rt in range(2):
            ops.append(("VM", f"buffer_load_dwordx4 {xfrag(rt,s)}, v{vTmp}, {sr(sXN,4)}, s{st2 if rt==0 else sLoop} offen offset:{(s%4)*1024}", ("x", s)))
        if s % 4 == 3:
            ops.append(f"s_add_u32 s{st2}, s{st2}, 4096")
            ops.append(f"s_add_u32 s{sLoop}, s{sLoop}, 4096")
        return ops

    for o in next_fetch(): a.e(o)
    for i in range(6):
        for o in dma_piece(0, i): emit(o)
    a.e(f"s_lshl_b32 s{st2}, s{smt}, 3")
    a.e(f"s_lshl_b32 s{st1}, s{sw}, 1")
    a.e(f"s_add_u32 s{st2}, s{st2}, s{st1}")
    a.e(f"s_mul_i32 s{st2}, s{st2}, 36864")
    a.e(f"s_add_u32 s{sLoop}, s{st2}, 36864")
    a.e(f"v_lshlrev_b32 v{vTmp}, 4, v{vLane}")
    for s in range(12):
        for o in xload(s): emit(o)
    for i in range(6):
        for o in dma_piece(1, i): emit(o)
    for s in range(12, 24):
        for o in xload(s): emit(o)
    a.e(f"v_lshrrev_b32 v{vTmp2}, 4, v{vLane}")
    a.e(f"v_and_b32 v{vTmp2}, 1, v{vTmp2}")
    a.e(f"v_mul_u32_u24 v{vRd[0][0]}, {12288+32}, v{vTmp2}")
    a.e(f"v_lshrrev_b32 v{vTmp2}, 5, v{vLane}")
    a.e(f"v_lshl_add_u32 v{vRd[0][0]}, v{vTmp2}, 9, v{vRd[0][0]}")
    a.e(f"v_bfe_u32 v{vTmp2}, v{vLane}, 2, 2")
    a.e(f"v_lshl_add_u32 v{vRd[0][0]}, v{vTmp2}, 6, v{vRd[0][0]}")
    a.e(f"v_and_b32 v{vTmp2}, 3, v{vLane}")
    a.e(f"v_lshl_add_u32 v{vRd[0][0]}, v{vTmp2}, 3, v{vRd[0][0]}")
    a.e(f"v_xor_b32 v{vRd[0][1]}, 32, v{vRd[0][0]}")
    a.e(f"v_add_u32 v{vRd[1][0]}, {3*STG}, v{vRd[0][0]}")
    a.e(f"v_add_u32 v{vRd[1][1]}, {3*STG}, v{vRd[0][1]}")
    a.e(f"v_bfe_u32 v{vTmp2}, v{vLane}, 4, 1")
    a.e(f"v_mul_u32_u24 v{vHst}, 147456, v{vTmp2}")
    a.e(f"v_lshrrev_b32 v{vTmp2}, 5, v{vLane}")
    a.e(f"v_lshl_add_u32 v{vHst}, v{vTmp2}, 8, v{vHst}")
    a.e(f"v_and_b32 v{vTmp2}, 15, v{vLane}")
    a.e(f"v_lshl_add_u32 v{vHst}, v{vTmp2}, 4, v{vHst}")
    a.e(f"v_and_b32 v{vTmp2}, 31, v{vLane}")
    a.e(f"v_mul_u32_u24 v{vQst}, 3456, v{vTmp2}")
    a.e(f"v_lshrrev_b32 v{vTmp2}, 5, v{vLane}")
    a.e(f"v_lshl_add_u32 v{vQst}, v{vTmp2}, 3, v{vQst}")
    a.e(f"v_mov_b32 v{vC1}, 0x{f2u(GC1):08x}")
    a.e(f"s_lshl_b32 s{st0}, s{smt}, 4")
    a.e(f"s_lshl_b32 s{st1}, s{sw}, 2")
    a.e(f"s_add_u32 s{st0}, s{st0}, s{st1}")
    a.e(f"s_mul_i32 s{sHoff}, s{st0}, 147456")
    a.e(f"s_lshl_b32 s{st1}, s{sfb0}, 10")
    a.e(f"s_add_u32 s{sHoff}, s{sHoff}, s{st1}")
    a.e(f"s_add_u32 s{sHoff2}, s{sHoff}, {2*147456}")
    a.e(f"s_lshl_b32 s{st0}, s{smt}, 8")
    a.e(f"s_lshl_b32 s{st1}, s{sw}, 6")
    a.e(f"s_add_u32 s{st0}, s{st0}, s{st1}")
    a.e(f"s_mul_i32 s{sQrow}, s{st0}, 3456")
    stamp()
    vt.wait_tag(("dma", 0))
    a.e("s_barrier")
    stamp()

    def rd(par, s, c):
        if 'noread' in OPT: return
        w = WF + 8 * (s % 4) + 4 * c
        off = (s // 12) * STG + (s % 12) * 1024
        lt.issue(f"ds_read_b64_tr_b16 {vr(w,2)}, v{vRd[par][c]} offset:{off}", None)
        lt.issue(f"ds_read_b64_tr_b16 {vr(w+2,2)}, v{vRd[par][c]} offset:{off+256}", ("w", s % 4, c))

    def epiF(st_):
        ops = []
        k = 0
        for c in range(2):
            for rt in range(2):
                P = ACC[st_][c][rt]; Tt = T[k % 2]; k += 1
                for r in range(8): ops.append(f"v_mul_f32 v{Tt+r}, v{P+r}, v{P+r}")
                for r in range(8): ops.append(f"v_mul_f32 v{P+8+r}, v{P+r}, v{P+8+r}")
                for r in range(8): ops.append(f"v_fmaak_f32 v{Tt+r}, v{vC1}, v{Tt+r}, 0x{f2u(GC0):08x}")
                for r in range(8): ops.append(f"v_mul_f32 v{Tt+r}, v{Tt+r}, v{P+r}")
                for r in range(8): ops.append(f"v_exp_f32 v{Tt+r}, v{Tt+r}")
                for r in range(8): ops.append(f"v_add_f32 v{Tt+r}, 1.0, v{Tt+r}")
                for r in range(8): ops.append(f"v_rcp_f32 v{Tt+r}, v{Tt+r}")
                for r in range(8): ops.append(f"v_mul_f32 v{P+8+r}, v{P+8+r}, v{Tt+r}")
                for r in range(4): ops.append(f"v_cvt_pk_bf16_f32 v{Tt+r}, v{P+8+2*r}, v{P+9+2*r}")
                so = sHoff if rt == 0 else sHoff2
                ops.append(("VM", f"buffer_store_dwordx4 {vr(Tt,4)}, v{vHst}, {sr(sH,4)}, s{so} offen offset:{c*512}", None))
        ops.append(f"s_add_u32 s{sHoff}, s{sHoff}, 1024")
        ops.append(f"s_add_u32 s{sHoff2}, s{sHoff2}, 1024")
        return ops

    def epiQ(st_, nch):
        ops = []
        k = 0
        for c in range(nch):
            for rt in range(2):
                P = ACC[st_][c][rt]; Tt = T[k % 2]; k += 1
                for r in range(8): ops.append(f"v_cvt_pk_bf16_f32 v{Tt+r}, v{P+2*r}, v{P+2*r+1}")
                for rg in range(4):
                    so = [[sQoG, sQoU], [sQoG2, sQoU2]][rt][rg // 2]
                    ops.append(("VM", f"buffer_store_dwordx2 {vr(Tt+2*rg,2)}, v{vQst}, {sr(sQKV,4)}, s{so} offen offset:{c*32+(rg%2)*16}", None))
        return ops

    def setq(g, u):
        a.e(f"s_add_u32 s{sQoG}, s{sQrow}, s{g}")
        a.e(f"s_add_u32 s{sQoU}, s{sQrow}, s{u}")
        a.e(f"s_add_u32 s{sQoG2}, s{sQoG}, {32*3456}")
        a.e(f"s_add_u32 s{sQoU2}, s{sQoU}, {32*3456}")

    def body(par, pend, nch=2, first=False, last=False, next_nch=2):
        pend = list(pend)
        if 'noepi' in OPT: pend = [o for o in pend if isinstance(o, str) and o.startswith("s_")]
        nm = 2 * nch
        nper = -(-len(pend) // (33 * nm)) if pend else 0
        extra = []
        if first:
            for i in range(6): extra.append(dma_piece(2, i))
            for s in range(24, 36): extra.append(xload(s))
            extra.append(next_fetch())
            for sl in (3, 4):
                for i in range(6): extra.append(dma_piece(sl, i))
            for c in range(nch):
                for s in range(3): pass
            for s in range(3):
                for c in range(nch): rd(par, s, c)
        dq = []
        for s in range(36):
            stg = s // 12; ks = s % 12
            sn = s + 3
            if sn < 36:
                for c in range(nch): rd(par, sn, c)
            elif not last:
                for c in range(next_nch): rd(par ^ 1, sn - 36, c)
            if first:
                vt.wait_tag(("x", s))
            lt.wait_tag(("w", s % 4, nch - 1))
            for m in range(nm):
                c = m // 2; rt = m % 2
                P = ACC[par][c][rt]
                cc = "0" if s == 0 else vr(P, 16)
                a.e(f"v_mfma_f32_32x32x16_bf16 {vr(P,16)}, {vr(WF+8*(s%4)+4*c,4)}, {xfrag(rt,s)}, {cc}")
                if s >= 1:
                    for _ in range(nper):
                        if pend: emit(pend.pop(0))
                if first and extra:
                    for o in extra.pop(0): emit(o)
                if dq and m % 2 == 1:
                    for o in dq.pop(0): emit(o)
            bar_ks = 8 if (first and stg == 0) else 1
            if ks == bar_ks and not (last and stg == 2) :
                if first:
                    assert not extra
                    vt.wait_tag(("dma", (stg + 1) % 6))
                else:
                    assert not dq
                    a.e(f"s_waitcnt vmcnt({12 if (last and stg == 1) else 18})")
                a.e("s_barrier")
                if not last:
                    slot = (3 * par + stg + 5) % 6
                    if stg == 1: dq.append(next_fetch())
                    for i in range(6): dq.append(dma_piece(slot, i))
        assert not pend and not dq, (len(pend), len(dq))

    body(0, [], first=True)
    stamp()
    a.e(f"s_mov_b32 s{sLoop}, 0")
    snap = lt.snapshot()
    a.lab("K1_loop")
    body(1, epiF(0))
    stamp()
    body(0, epiF(1))
    stamp()
    if 'stamp' not in OPT: assert lt.snapshot() == snap
    a.e(f"s_add_u32 s{sLoop}, s{sLoop}, 1")
    a.e(f"s_cmp_lt_u32 s{sLoop}, 2")
    a.e("s_cbranch_scc1 K1_loop")
    snap = lt.snapshot()
    setq(sQ1G, sQ1U)
    a.e(f"s_cmp_eq_u32 s{sNQ}, 2")
    a.e("s_cbranch_scc1 K1_tailB2")
    a.e(f"s_cmp_eq_u32 s{sNQ}, 3")
    a.e("s_cbranch_scc1 K1_B3")
    body(1, epiF(0), nch=1, last=True)
    a.e("s_branch K1_tailS")
    a.lab("K1_B3")
    lt.restore(snap)
    body(1, epiQ(0, 2), nch=1, last=True)
    setq(sQ2G, sQ2U)
    a.lab("K1_tailS")
    dump()
    a.e("s_nop 15")
    for o in epiQ(1, 1): emit(o)
    a.e("s_endpgm")
    a.lab("K1_tailB2")
    dump()
    a.e("s_nop 15")
    for o in epiQ(0, 2): emit(o)
    a.lab("K1_done")
    a.e("s_endpgm")
    d = f""".p2align 6
.amdhsa_kernel gemm1_kernel
  .amdhsa_next_free_vgpr {NVA+256}
  .amdhsa_next_free_sgpr 84
  .amdhsa_accum_offset {NVA}
  .amdhsa_group_segment_fixed_size 0
  .amdhsa_kernarg_size 80
  .amdhsa_user_sgpr_count 2
  .amdhsa_user_sgpr_kernarg_segment_ptr 1
  .amdhsa_system_sgpr_workgroup_id_x 1
.end_amdhsa_kernel
"""
    return a.text(), d
```

```python
from gen_common import *

def gen_k3(OPT=set()):
    a = A()
    kheader(a, "gemm2_kernel")
    ACC = 0
    WF = 72
    NH = 8
    HF = 108
    vLane, vRdA, vRdB, vTmp, vTmp2, vHo = 172, 173, 174, 175, 176, 177
    vDma = [178, 179, 180, 181, 182]
    vRed = 183
    NV = 184
    AQ = 0
    AK = 10
    AL = 50
    AO = 54
    AT = 74
    STG = 36864
    sWd, sH, sP, sQKV, sO = 12, 16, 20, 24, 28
    (sw, smt, snt, sks, srg, skh, st0, st1, st2, sSrc, sH0, sH1, sPo, sQ5) = range(32, 46)

    a.e("s_cmp_ge_u32 s2, 256")
    a.e("s_cbranch_scc1 K3_done")
    a.e("s_load_dwordx2 s[4:5], s[0:1], 48")
    a.e("s_load_dwordx2 s[10:11], s[0:1], 72")
    a.e(f"v_and_b32 v{vLane}, 63, v0")
    a.e(f"v_lshrrev_b32 v{vTmp}, 6, v0")
    a.e("s_nop 0")
    a.e(f"v_readfirstlane_b32 s{sw}, v{vTmp}")
    a.e(f"s_and_b32 s{st0}, s2, 7")
    a.e(f"s_lshr_b32 s{st1}, s2, 3")
    a.e(f"s_lshr_b32 s{sks}, s{st0}, 1")
    a.e(f"s_and_b32 s{st0}, s{st0}, 1")
    a.e(f"s_lshl_b32 s{smt}, s{st0}, 3")
    a.e(f"s_lshr_b32 s{st2}, s{st1}, 2")
    a.e(f"s_add_u32 s{smt}, s{smt}, s{st2}")
    a.e(f"s_and_b32 s{snt}, s{st1}, 3")
    a.e(f"s_and_b32 s{srg}, s{sw}, 3")
    a.e(f"s_lshr_b32 s{skh}, s{sw}, 2")
    a.e("s_waitcnt lgkmcnt(0)")
    srd(a, sWd, 4, 4608*1152)
    srd(a, sH, 10, 2048*9216, add=L.H)
    srd(a, sP, 10, 4*2048*576*4, add=L.PART)
    srd(a, sQKV, 10, 2048*3456, add=L.QKV)
    srd(a, sO, 10, 2048*1152, add=L.O)
    a.e(f"s_add_u32 s{sQ5}, s{srg}, 32")
    for i in range(5):
        if i < 4:
            a.e(f"s_add_u32 s{st0}, s{sw}, {8*i}")
        else:
            a.e(f"s_mov_b32 s{st0}, s{sQ5}")
        a.e(f"s_cmp_ge_u32 s{st0}, 18")
        a.e(f"s_cselect_b32 s{st1}, 18, 0")
        a.e(f"s_cselect_b32 s{st2}, {576*1152}, 0")
        a.e(f"s_sub_u32 s{st0}, s{st0}, s{st1}")
        a.e(f"s_lshl_b32 s{st0}, s{st0}, 6")
        a.e(f"v_add_u32 v{vTmp}, s{st0}, v{vLane}")
        a.e(f"v_mul_u32_u24 v{vTmp2}, 3641, v{vTmp}")
        a.e(f"v_lshrrev_b32 v{vTmp2}, 16, v{vTmp2}")
        a.e(f"v_mul_u32_u24 v{vDma[i]}, {1152-18*16}, v{vTmp2}")
        a.e(f"v_lshl_add_u32 v{vDma[i]}, v{vTmp}, 4, v{vDma[i]}")
        a.e(f"v_add_u32 v{vDma[i]}, s{st2}, v{vDma[i]}")
    a.e(f"s_mul_i32 s{sSrc}, s{sks}, {1152*1152}")
    a.e(f"s_mul_i32 s{st0}, s{snt}, 288")
    a.e(f"s_add_u32 s{sSrc}, s{sSrc}, s{st0}")
    a.e(f"s_lshl_b32 s{st1}, s{sw}, 10")
    a.e(f"s_lshl_b32 s{sQ5}, s{sQ5}, 10")

    vt = VmTracker(a)
    lt = LgkmTracker(a)
    def emit(o):
        if isinstance(o, tuple): vt.issue(o[1], o[2])
        else: a.e(o)
    def dma_stage(stage):
        slot = stage % 4
        groups = []
        for i in range(5):
            g = []
            if i < 4: g.append(f"s_add_u32 m0, s{st1}, {slot*STG + i*8192}")
            else: g.append(f"s_add_u32 m0, s{sQ5}, {slot*STG}")
            g.append("s_nop 0")
            g.append(("VM", f"buffer_load_dwordx4 v{vDma[i]}, {sr(sWd,4)}, s{sSrc} offen lds", ("dma", stage)))
            if i == 4: g.append(f"s_add_u32 s{sSrc}, s{sSrc}, {64*1152}")
            groups.append(g)
        return groups
    a.e(f"s_lshl_b32 s{st0}, s{smt}, 3")
    a.e(f"s_lshl_b32 s{st2}, s{srg}, 1")
    a.e(f"s_add_u32 s{st0}, s{st0}, s{st2}")
    a.e(f"s_mul_i32 s{sH0}, s{st0}, 147456")
    a.e(f"s_mul_i32 s{st2}, s{sks}, {36*1024}")
    a.e(f"s_add_u32 s{sH0}, s{sH0}, s{st2}")
    a.e(f"s_mul_i32 s{st2}, s{skh}, {18*1024}")
    a.e(f"s_add_u32 s{sH0}, s{sH0}, s{st2}")
    a.e(f"s_add_u32 s{sH1}, s{sH0}, 147456")
    a.e(f"s_lshl_b32 s{st2}, s{sks}, 7")
    a.e(f"s_add_u32 s{st0}, s{st0}, s{st2}")
    a.e(f"s_mul_i32 s{sPo}, s{st0}, {36*1024}")
    a.e(f"s_mul_i32 s{st2}, s{snt}, {9*1024}")
    a.e(f"s_add_u32 s{sPo}, s{sPo}, s{st2}")
    a.e(f"v_lshlrev_b32 v{vHo}, 4, v{vLane}")
    def hload(step):
        ops = []
        for mi in range(2):
            r = HF + ((step % NH) * 2 + mi) * 4
            ops.append(("VM", f"buffer_load_dwordx4 {vr(r,4)}, v{vHo}, {sr(sH,4)}, s{sH0 if mi==0 else sH1} offen offset:{(step%4)*1024}", ("h", step)))
        if step % 4 == 3:
            ops.append(f"s_add_u32 s{sH0}, s{sH0}, 4096")
            ops.append(f"s_add_u32 s{sH1}, s{sH1}, 4096")
        return ops
    for g in dma_stage(0):
        for o in g: emit(o)
    for st in range(2):
        for o in hload(st): emit(o)
    for g in dma_stage(1):
        for o in g: emit(o)
    if 'noattn' not in OPT:
        a.e(f"s_lshl_b32 s{st0}, s2, 3")
        a.e(f"s_add_u32 s{st0}, s{st0}, s{sw}")
        a.e(f"v_and_b32 v{vTmp}, 31, v{vLane}")
        a.e(f"v_mul_u32_u24 v{vTmp}, 36, v{vTmp}")
        a.e(f"s_mul_i32 s{st2}, s{st0}, 3456")
        a.e(f"v_add_u32 v{vTmp}, s{st2}, v{vTmp}")
        a.e(f"v_lshrrev_b32 v{vTmp2}, 5, v{vLane}")
        a.e(f"v_mul_u32_u24 v{AT}, {8*3456}, v{vTmp2}")
        a.e(f"v_sub_u32 v{AT}, v{vTmp}, v{AT}")
        def vload(dst, voff, part, tag):
            vt.issue(f"buffer_load_dwordx4 {vr(dst,4)}, v{voff}, {sr(sQKV,4)}, 0 offen offset:{part*1152}", None)
            vt.issue(f"buffer_load_dwordx4 {vr(dst+4,4)}, v{voff}, {sr(sQKV,4)}, 0 offen offset:{part*1152+16}", None)
            vt.issue(f"buffer_load_dword v{dst+8}, v{voff}, {sr(sQKV,4)}, 0 offen offset:{part*1152+32}", tag)
        vload(AQ, vTmp, 0, ("q",))
        for i in range(4):
            a.e(f"v_subrev_u32 v{AO+i}, {2*3456*i}, v{AT}")
        for i in range(4):
            vload(AK + 10*i, AO+i, 1, ("k", i))
        vt.wait_tag(("k", 3))
        for i in range(4):
            a.e(f"v_dot2_f32_bf16 v{AL+i}, v{AQ}, v{AK+10*i}, 0")
        for d in range(1, 9):
            for i in range(4):
                a.e(f"v_dot2_f32_bf16 v{AL+i}, v{AQ+d}, v{AK+10*i+d}, v{AL+i}")
        a.e("s_nop 3")
        for i in range(4):
            vload(AK + 10*i, AO+i, 2, ("v", i))
        sc = (18 ** -0.5) * math.log2(math.e)
        a.e(f"v_lshlrev_b32 v{AT+1}, 3, v{vTmp2}")
        a.e(f"v_sub_u32 v{AT+1}, s{st0}, v{AT+1}")
        a.e(f"v_mov_b32 v{AT}, 0x{f2u(-1e9*math.log2(math.e)):08x}")
        for i in range(4):
            a.e(f"v_mul_f32 v{AL+i}, 0x{f2u(sc):08x}, v{AL+i}")
        for i in range(4):
            a.e(f"v_cmp_le_i32 vcc, {2*i}, v{AT+1}")
            a.e("s_nop 1")
            a.e(f"v_cndmask_b32 v{AL+i}, v{AT}, v{AL+i}, vcc")
        a.e(f"v_max_f32 v{AT}, v{AL}, v{AL+1}")
        a.e(f"v_max3_f32 v{AT}, v{AT}, v{AL+2}, v{AL+3}")
        a.e(f"v_mov_b32 v{AT+1}, v{AT}")
        a.e("s_nop 1")
        a.e(f"v_permlane32_swap_b32 v{AT}, v{AT+1}")
        a.e("s_nop 1")
        a.e(f"v_max_f32 v{AT}, v{AT}, v{AT+1}")
        for i in range(4):
            a.e(f"v_sub_f32 v{AL+i}, v{AL+i}, v{AT}")
        for i in range(4):
            a.e(f"v_exp_f32 v{AL+i}, v{AL+i}")
        a.e("s_nop 0")
        a.e(f"v_add_f32 v{AT}, v{AL}, v{AL+1}")
        a.e(f"v_add_f32 v{AT+1}, v{AL+2}, v{AL+3}")
        a.e(f"v_add_f32 v{AT}, v{AT}, v{AT+1}")
        a.e(f"v_mov_b32 v{AT+1}, v{AT}")
        a.e("s_nop 1")
        a.e(f"v_permlane32_swap_b32 v{AT}, v{AT+1}")
        a.e("s_nop 1")
        a.e(f"v_add_f32 v{AT}, v{AT}, v{AT+1}")
        a.e(f"v_rcp_f32 v{AT}, v{AT}")
        a.e("s_nop 0")
        for i in range(4):
            a.e(f"v_mul_f32 v{AL+i}, v{AL+i}, v{AT}")
        vt.wait_tag(("v", 3))
        for dd in range(9):
            for i in range(4):
                a.e(f"v_lshlrev_b32 v{AQ+i}, 16, v{AK+10*i+dd}")
                a.e(f"v_and_b32 v{AQ+4+i}, 0xffff0000, v{AK+10*i+dd}")
            a.e(f"v_mul_f32 v{AO+2*dd}, v{AL}, v{AQ}")
            a.e(f"v_mul_f32 v{AO+2*dd+1}, v{AL}, v{AQ+4}")
            for i in range(1, 4):
                a.e(f"v_fmac_f32 v{AO+2*dd}, v{AL+i}, v{AQ+i}")
                a.e(f"v_fmac_f32 v{AO+2*dd+1}, v{AL+i}, v{AQ+4+i}")
        a.e(f"v_mov_b32 v{AO+18}, 0")
        a.e(f"v_mov_b32 v{AO+19}, 0")
        a.e("s_nop 1")
        for d in range(10):
            a.e(f"v_permlane32_swap_b32 v{AO+d}, v{AO+10+d}")
        a.e("s_nop 1")
        for d in range(10):
            a.e(f"v_add_f32 v{AO+d}, v{AO+d}, v{AO+10+d}")
        for d in range(5):
            a.e(f"v_cvt_pk_bf16_f32 v{AQ+d}, v{AO+2*d}, v{AO+2*d+1}")
        a.e(f"v_and_b32 v{vTmp}, 31, v{vLane}")
        a.e(f"v_mul_u32_u24 v{vTmp}, 36, v{vTmp}")
        a.e(f"v_mul_u32_u24 v{AT}, 20, v{vTmp2}")
        a.e(f"v_add_u32 v{vTmp}, v{vTmp}, v{AT}")
        a.e(f"v_lshl_add_u32 v{AT}, v{vTmp2}, 31, v{vTmp}")
        a.e(f"s_mul_i32 s{st2}, s{st0}, 1152")
        vt.issue(f"buffer_store_dwordx4 {vr(AQ,4)}, v{vTmp}, {sr(sO,4)}, s{st2} offen", None)
        vt.issue(f"buffer_store_dword v{AQ+4}, v{AT}, {sr(sO,4)}, s{st2} offen offset:16", None)
    for st in range(2, NH - 2):
        for o in hload(st): emit(o)
    for g in dma_stage(2):
        for o in g: emit(o)
    a.e(f"v_lshrrev_b32 v{vTmp}, 5, v{vLane}")
    a.e(f"v_lshlrev_b32 v{vTmp}, 4, v{vTmp}")
    a.e(f"v_bfe_u32 v{vTmp2}, v{vLane}, 4, 1")
    a.e(f"v_lshl_add_u32 v{vTmp}, v{vTmp2}, 2, v{vTmp}")
    a.e(f"v_bfe_u32 v{vTmp2}, v{vLane}, 2, 2")
    a.e(f"v_add_u32 v{vTmp}, v{vTmp}, v{vTmp2}")
    a.e(f"v_mul_u32_u24 v{vRdA}, 288, v{vTmp}")
    a.e(f"v_and_b32 v{vTmp2}, 3, v{vLane}")
    a.e(f"v_lshl_add_u32 v{vRdA}, v{vTmp2}, 3, v{vRdA}")
    a.e(f"s_mul_i32 s{st0}, s{skh}, 18432")
    a.e(f"v_add_u32 v{vRdA}, s{st0}, v{vRdA}")
    a.e(f"v_add_u32 v{vRdB}, {2*STG}, v{vRdA}")
    vt.wait_tag(("dma", 0))
    a.e("s_barrier")
    PD = 6
    def rd(n):
        step, t = divmod(n, 9)
        stage, stp = divmod(step, 2)
        slot = stage % 4
        base = vRdA if slot < 2 else vRdB
        off = (slot % 2) * STG + stp * 9216 + t * 32
        w = WF + 4 * (n % 9)
        lt.issue(f"ds_read_b64_tr_b16 {vr(w,2)}, v{base} offset:{off}", None)
        lt.issue(f"ds_read_b64_tr_b16 {vr(w+2,2)}, v{base} offset:{off+2304}", ("w", n))
    NF = 18 * 9
    for n in range(PD): rd(n)
    dq = []
    for n in range(NF):
        step, t = divmod(n, 9)
        stage, stp = divmod(step, 2)
        if n + PD < NF: rd(n + PD)
        if t == 0: vt.wait_tag(("h", step))
        lt.wait_tag(("w", n))
        for mi in range(2):
            acc = ACC + (t * 2 + mi) * 4
            cc = "0" if step == 0 else vr(acc, 4)
            a.e(f"v_mfma_f32_16x16x32_bf16 {vr(acc,4)}, {vr(WF+4*(n%9),4)}, {vr(HF+((step%NH)*2+mi)*4,4)}, {cc}")
        if dq:
            for o in dq.pop(0): emit(o)
        if t == 8 and step + NH - 2 < 18 and True:
            dq.append(hload(step + NH - 2))
        if stp == 0 and t == 2 and stage < 8:
            vt.wait_tag(("dma", stage + 1))
            a.e("s_barrier")
            if stage + 3 < 9:
                dq += dma_stage(stage + 3)
    assert not dq
    a.e("s_waitcnt vmcnt(0) lgkmcnt(0)")
    a.e("s_barrier")
    a.e("s_nop 4")
    a.e(f"s_xor_b32 s{st0}, s{sw}, 4")
    a.e(f"s_mul_i32 s{st0}, s{st0}, 9216")
    a.e(f"v_add_u32 v{vTmp}, s{st0}, v{vHo}")
    a.e(f"s_mul_i32 s{st0}, s{sw}, 9216")
    a.e(f"v_add_u32 v{vTmp2}, s{st0}, v{vHo}")
    a.e(f"s_cmp_eq_u32 s{skh}, 1")
    a.e("s_cbranch_scc1 K3_kh1")
    for kh in range(2):
        if kh == 1: a.lab("K3_kh1")
        own = list(range(9)) if kh == 0 else list(range(9, 18))
        oth = list(range(9, 18)) if kh == 0 else list(range(9))
        for i, j in enumerate(oth):
            a.e(f"ds_write_b128 v{vTmp}, {vr(ACC+4*j,4)} offset:{i*1024}")
        a.e("s_waitcnt lgkmcnt(0)")
        a.e("s_barrier")
        for i, j in enumerate(own):
            a.e(f"ds_read_b128 {vr(WF+4*i,4)}, v{vTmp2} offset:{i*1024}")
        a.e(f"s_add_u32 s{st0}, s{sPo}, {36*1024}")
        for i, j in enumerate(own):
            a.e(f"s_waitcnt lgkmcnt({8-i})")
            for r in range(4):
                a.e(f"v_add_f32 v{ACC+4*j+r}, v{ACC+4*j+r}, v{WF+4*i+r}")
            t, mi = divmod(j, 2)
            so = sPo if mi == 0 else st0
            if t * 1024 < 4096:
                a.e(f"buffer_store_dwordx4 {vr(ACC+4*j,4)}, v{vHo}, {sr(sP,4)}, s{so} offen offset:{t*1024}")
            else:
                a.e(f"s_add_u32 s{st2}, s{so}, {t*1024}")
                a.e(f"buffer_store_dwordx4 {vr(ACC+4*j,4)}, v{vHo}, {sr(sP,4)}, s{st2} offen")
        a.e("s_endpgm")
    a.lab("K3_done")
    a.e("s_endpgm")
    return a.text(), kdesc("gemm2_kernel", NV, 64)
```

```python
from gen_common import *

def gen_k4(OPT=set()):
    a = A()
    kheader(a, "final_kernel")
    ACC = 0
    PP = 24
    XR = 72
    FR = 84
    vLane, vO, vL16, vXo, vTmp, vTmp2 = 204, 205, 206, 207, 208, 209
    TT = 210
    NV = 220
    sX, sOut, sO, sWO, sP = 12, 16, 20, 24, 28
    (sw, srt, sng, sgrp, skh, st0, st1, st2, sWoff, sPo, sOo) = range(32, 43)
    a.e("s_cmp_ge_u32 s2, 256")
    a.e("s_cbranch_scc1 K4_done")
    a.e("s_load_dwordx2 s[4:5], s[0:1], 0")
    a.e("s_load_dwordx2 s[6:7], s[0:1], 56")
    a.e("s_load_dwordx2 s[10:11], s[0:1], 72")
    a.e(f"v_and_b32 v{vLane}, 63, v0")
    a.e(f"v_lshrrev_b32 v{vTmp}, 6, v0")
    a.e("s_nop 0")
    a.e(f"v_readfirstlane_b32 s{sw}, v{vTmp}")
    a.e(f"s_lshr_b32 s{srt}, s2, 2")
    a.e(f"s_and_b32 s{sng}, s2, 3")
    a.e(f"s_cmp_ge_u32 s{sw}, 3")
    a.e(f"s_cselect_b32 s{skh}, 1, 0")
    a.e(f"s_mul_i32 s{st0}, s{skh}, 3")
    a.e(f"s_sub_u32 s{sgrp}, s{sw}, s{st0}")
    a.e("s_waitcnt lgkmcnt(0)")
    srd(a, sX, 4, 2048*1152)
    srd(a, sOut, 6, 2048*1152)
    srd(a, sO, 10, 2048*1152, add=L.O)
    srd(a, sWO, 10, 576*1152, add=L.WOF)
    srd(a, sP, 10, 4*2048*576*4, add=L.PART)
    a.e(f"v_lshlrev_b32 v{vL16}, 4, v{vLane}")
    a.e(f"v_and_b32 v{vTmp}, 15, v{vLane}")
    a.e(f"v_mul_u32_u24 v{vO}, 1152, v{vTmp}")
    a.e(f"v_lshrrev_b32 v{vTmp2}, 4, v{vLane}")
    a.e(f"v_lshl_add_u32 v{vXo}, v{vTmp2}, 3, v{vO}")
    a.e(f"v_lshl_add_u32 v{vO}, v{vTmp2}, 4, v{vO}")
    a.e(f"s_mul_i32 s{sOo}, s{srt}, {32*1152}")
    a.e(f"s_mul_i32 s{st0}, s{skh}, {9*64}")
    a.e(f"s_add_u32 s{sOo}, s{sOo}, s{st0}")
    a.e(f"s_mul_i32 s{st0}, s{sng}, 9")
    a.e(f"s_mul_i32 s{st1}, s{sgrp}, 3")
    a.e(f"s_add_u32 s{st0}, s{st0}, s{st1}")
    a.e(f"s_mul_i32 s{sWoff}, s{st0}, {18*1024}")
    a.e(f"s_mul_i32 s{st1}, s{skh}, {9*1024}")
    a.e(f"s_add_u32 s{sWoff}, s{sWoff}, s{st1}")
    a.e(f"s_lshl_b32 s{st1}, s{skh}, 8")
    a.e(f"s_lshl_b32 s{st2}, s{srt}, 1")
    a.e(f"s_add_u32 s{st1}, s{st1}, s{st2}")
    a.e(f"s_mul_i32 s{sPo}, s{st1}, 36")
    a.e(f"s_add_u32 s{sPo}, s{sPo}, s{st0}")
    a.e(f"s_lshl_b32 s{sPo}, s{sPo}, 10")
    vt = VmTracker(a)
    def fload(s):
        b = FR + (s % 6) * 20
        a.e(f"s_add_u32 s{st1}, s{sOo}, {16*1152}")
        vt.issue(f"buffer_load_dwordx4 {vr(b,4)}, v{vO}, {sr(sO,4)}, s{sOo} offen offset:{s*64}", None)
        vt.issue(f"buffer_load_dwordx4 {vr(b+4,4)}, v{vO}, {sr(sO,4)}, s{st1} offen offset:{s*64}", None)
        for tt in range(3):
            a.e(f"s_add_u32 s{st1}, s{sWoff}, {tt*18*1024 + s*1024}")
            vt.issue(f"buffer_load_dwordx4 {vr(b+8+4*tt,4)}, v{vL16}, {sr(sWO,4)}, s{st1} offen", ("f", s))
    for s in range(6): fload(s)
    for k2 in range(2):
        for mi in range(2):
            a.e(f"s_add_u32 s{st1}, s{sPo}, {(k2*128+mi)*36*1024}")
            for tt in range(3):
                vt.issue(f"buffer_load_dwordx4 {vr(PP+k2*24+(tt*2+mi)*4,4)}, v{vL16}, {sr(sP,4)}, s{st1} offen offset:{tt*1024}", ("p",))
    a.e(f"s_mul_i32 s{st2}, s{srt}, {32*1152}")
    a.e(f"s_lshl_b32 s{st0}, s{st0}, 5")
    a.e(f"s_add_u32 s{st2}, s{st2}, s{st0}")
    a.e(f"s_add_u32 s{st0}, s{st2}, {16*1152}")
    for mi in range(2):
        for tt in range(3):
            vt.issue(f"buffer_load_dwordx2 {vr(XR+(tt*2+mi)*2,2)}, v{vXo}, {sr(sX,4)}, s{st2 if mi==0 else st0} offen offset:{tt*32}", ("x",))
    for s in range(9):
        vt.wait_tag(("f", s))
        b = FR + (s % 6) * 20
        for tt in range(3):
            for mi in range(2):
                acc = ACC + (tt*2+mi)*4
                cc = "0" if s == 0 else vr(acc, 4)
                a.e(f"v_mfma_f32_16x16x32_bf16 {vr(acc,4)}, {vr(b+8+4*tt,4)}, {vr(b+4*mi,4)}, {cc}")
        if s + 6 < 9: fload(s + 6)
    vt.wait_tag(("x",))
    for i in range(24):
        a.e(f"v_add_f32 v{PP+i}, v{PP+i}, v{PP+24+i}")
    a.e(f"s_mul_i32 s{st1}, s{sgrp}, 12288")
    a.e(f"v_add_u32 v{vTmp}, s{st1}, v{vL16}")
    a.e(f"s_cmp_eq_u32 s{skh}, 0")
    a.e("s_cbranch_scc1 K4_fin")
    for i in range(6):
        a.e(f"ds_write_b128 v{vTmp}, {vr(ACC+4*i,4)} offset:{i*1024}")
        a.e(f"ds_write_b128 v{vTmp}, {vr(PP+4*i,4)} offset:{6144+i*1024}")
    a.e("s_waitcnt lgkmcnt(0)")
    a.e("s_barrier")
    a.e("s_endpgm")
    a.lab("K4_fin")
    a.e("s_barrier")
    for i in range(12):
        a.e(f"ds_read_b128 {vr(FR+4*i,4)}, v{vTmp} offset:{i*1024}")
    a.e("s_waitcnt lgkmcnt(0)")
    for i in range(24):
        a.e(f"v_add_f32 v{ACC+i}, v{ACC+i}, v{FR+i}")
        a.e(f"v_add_f32 v{PP+i}, v{PP+i}, v{FR+24+i}")
    def rnd(r0, n, t):
        for i in range(0, n, 2):
            a.e(f"v_cvt_pk_bf16_f32 v{t+i//2}, v{r0+i}, v{r0+i+1}")
        for i in range(0, n, 2):
            a.e(f"v_lshlrev_b32 v{r0+i}, 16, v{t+i//2}")
            a.e(f"v_and_b32 v{r0+i+1}, 0xffff0000, v{t+i//2}")
    rnd(ACC, 24, FR)
    rnd(PP, 24, FR)
    E = PP + 24
    for i in range(24): a.e(f"v_mul_f32 v{E+i}, 0x{f2u(-math.log2(math.e)):08x}, v{PP+i}")
    for i in range(24): a.e(f"v_exp_f32 v{E+i}, v{E+i}")
    for i in range(24): a.e(f"v_add_f32 v{E+i}, 1.0, v{E+i}")
    for i in range(24): a.e(f"v_rcp_f32 v{E+i}, v{E+i}")
    for i in range(24): a.e(f"v_mul_f32 v{PP+i}, v{PP+i}, v{E+i}")
    rnd(PP, 24, FR)
    for i in range(24): a.e(f"v_mul_f32 v{PP+i}, v{PP+i}, v{ACC+i}")
    rnd(PP, 24, FR)
    for i in range(12):
        a.e(f"v_lshlrev_b32 v{E+2*i}, 16, v{XR+i}")
        a.e(f"v_and_b32 v{E+2*i+1}, 0xffff0000, v{XR+i}")
    for i in range(24): a.e(f"v_add_f32 v{PP+i}, v{PP+i}, v{E+i}")
    for i in range(12): a.e(f"v_cvt_pk_bf16_f32 v{FR+i}, v{PP+2*i}, v{PP+2*i+1}")
    for mi in range(2):
        for tt in range(3):
            a.e(f"buffer_store_dwordx2 {vr(FR+(tt*2+mi)*2,2)}, v{vXo}, {sr(sOut,4)}, s{st2 if mi==0 else st0} offen offset:{tt*32}")
    a.lab("K4_done")
    a.e("s_endpgm")
    return a.text(), kdesc("final_kernel", NV, 64)
```

```python
import os, sys
from gen_common import *
import k0, k1v2, k3, k4
OPT = set(os.environ.get('OPT','').split(','))
def main():
    parts = [k0.gen_k0(), k1v2.gen_k1(OPT), k3.gen_k3(OPT), k4.gen_k4(OPT)]
    hdr = open("recurrent_scan__sliding_local_dilated__geglu_ffn__prompt.s.ref").read().split("; Override")[0]
    out = hdr
    out += f"; @launch kernel=ln_kernel grid=({k0.K0_GRID},1,1) block=(256,1,1) lds=0\n"
    out += f"; @launch kernel=gemm1_kernel grid=(256,1,1) block=(256,1,1) lds=147456\n"
    out += f"; @launch kernel=gemm2_kernel grid=(256,1,1) block=(512,1,1) lds=147456\n"
    out += f"; @launch kernel=final_kernel grid=(256,1,1) block=(384,1,1) lds=36864\n"
    out += '.amdgcn_target "amdgcn-amd-amdhsa--gfx950"\n.text\n'
    for t, d in parts: out += t
    out += '.section .rodata,"a"\n'
    for t, d in parts: out += d
    dst = sys.argv[1] if len(sys.argv) > 1 else "recurrent_scan__sliding_local_dilated__geglu_ffn__prompt.s"
    open(dst, "w").write(out)
main()
```

```python
import struct, math, sys, os
import layout as L

def f2u(x):
    return struct.unpack("<I", struct.pack("<f", x))[0]

class A:
    def __init__(self):
        self.l = []
    def e(self, s):
        self.l.append("    " + s)
    def lab(self, s):
        self.l.append(s + ":")
    def c(self, s):
        self.l.append("    ; " + s)
    def text(self):
        return "\n".join(self.l) + "\n"

def vr(b, n):
    return f"v[{b}:{b+n-1}]"
def sr(b, n):
    return f"s[{b}:{b+n-1}]"

def srd(a, d, plo, nbytes, add=None):
    if add:
        a.e(f"s_add_u32 s{d}, s{plo}, {add}")
        a.e(f"s_addc_u32 s{d+1}, s{plo+1}, 0")
    else:
        a.e(f"s_mov_b32 s{d}, s{plo}")
        a.e(f"s_mov_b32 s{d+1}, s{plo+1}")
    a.e(f"s_mov_b32 s{d+2}, {nbytes}")
    a.e(f"s_mov_b32 s{d+3}, 0x00020000")

def kheader(a, name):
    a.l.append(f".globl {name}\n.p2align 8\n.type {name},@function\n{name}:")

def kdesc(name, nv, ns):
    acc = (nv + 3) // 4 * 4
    return f""".p2align 6
.amdhsa_kernel {name}
  .amdhsa_next_free_vgpr {nv}
  .amdhsa_next_free_sgpr {ns}
  .amdhsa_accum_offset {acc}
  .amdhsa_group_segment_fixed_size 0
  .amdhsa_kernarg_size 80
  .amdhsa_user_sgpr_count 2
  .amdhsa_user_sgpr_kernarg_segment_ptr 1
  .amdhsa_system_sgpr_workgroup_id_x 1
.end_amdhsa_kernel
"""


GC0 = -2.0 * math.sqrt(2.0 / math.pi) * math.log2(math.e)
GC1 = GC0 * 0.044715

class VmTracker:
    def __init__(self, a):
        self.a = a; self.n = 0; self.tags = {}; self.done = 0
    def issue(self, txt, tag):
        self.a.e(txt)
        self.n += 1
        if tag is not None: self.tags[tag] = self.n
    def wait_tag(self, tag):
        if tag not in self.tags: return
        k = self.tags[tag]
        if k <= self.done: return
        cnt = min(self.n - k, 63)
        self.a.e(f"s_waitcnt vmcnt({cnt})")
        self.done = self.n - cnt

class LgkmTracker:
    def __init__(self, a):
        self.a = a; self.q = []
    def issue(self, txt, tag):
        self.a.e(txt)
        self.q.append(tag)
    def wait_tag(self, tag):
        if tag not in self.q: return
        k = len(self.q) - 1 - self.q[::-1].index(tag)
        k = self.q.index(tag)
        cnt = len(self.q) - 1 - k
        if cnt > 15:
            k += cnt - 15; cnt = 15
        self.a.e(f"s_waitcnt lgkmcnt({cnt})")
        self.q = self.q[k+1:]
    def clear(self): self.q = []
    def snapshot(self): return list(self.q)
    def restore(self, s): self.q = list(s)

class Stamper:
    def __init__(self, a, on, vst, vtmp, vlane, sw, wsliteral=10, region=0):
        self.a, self.on, self.v, self.vt, self.vl, self.sw, self.ws, self.region = a, on, vst, vtmp, vlane, sw, wsliteral, region
        if on:
            a.e("s_memtime s[90:91]")
            a.e("s_mov_b32 s99, 0")
    def stamp(self, lt=None):
        if not self.on: return
        a = self.a
        a.e("s_memtime s[92:93]")
        a.e("s_waitcnt lgkmcnt(0)")
        if lt: lt.clear()
        a.e("s_sub_u32 s92, s92, s90")
        a.e("s_mov_b32 m0, s99")
        a.e("s_nop 0")
        a.e(f"v_writelane_b32 v{self.v}, s92, m0")
        a.e("s_add_u32 s99, s99, 1")
    def dump(self, lt=None):
        if not self.on: return
        a = self.a
        self.stamp(lt)
        a.e(f"s_add_u32 s92, s{self.ws}, {L.DBG + self.region*(1<<20)}"); a.e(f"s_addc_u32 s93, s{self.ws+1}, 0"); a.e("s_mov_b32 s94, 0x100000"); a.e("s_mov_b32 s95, 0x00020000")
        a.e("s_lshl_b32 s96, s2, 3")
        a.e(f"s_add_u32 s96, s96, s{self.sw}")
        a.e("s_lshl_b32 s96, s96, 8")
        a.e(f"v_lshlrev_b32 v{self.vt}, 2, v{self.vl}")
        a.e(f"buffer_store_dword v{self.v}, v{self.vt}, s[92:95], s96 offen")

def stf(OPT, k):
    for o in OPT:
        if o.startswith(f"st{k}="):
            return " " + o.split("=")[1].replace("+", " ")
    return ""
```

```python
from gen_common import *
NPF = 16
NLN = 256
K0_LNWO = NLN + 168
K0_GRID = K0_LNWO + 8*NPF
def gen_k0(OPT=set()):
    STF = stf(OPT, 0)
    a = A()
    kheader(a, "ln_kernel")
    a.e(f"s_cmp_ge_u32 s2, {K0_GRID}")
    a.e("s_cbranch_scc1 K0_done")
    a.e(f"s_cmp_ge_u32 s2, {K0_LNWO}")
    a.e("s_cbranch_scc1 K0_pf")
    a.e("s_load_dwordx2 s[4:5], s[0:1], 0")
    a.e("s_load_dwordx2 s[6:7], s[0:1], 16")
    a.e("s_load_dwordx2 s[8:9], s[0:1], 72")
    a.e("v_and_b32 v1, 63, v0")
    a.e("v_lshrrev_b32 v2, 6, v0")
    a.e("s_waitcnt lgkmcnt(0)")
    srd(a, 12, 4, 2048*1152)
    srd(a, 16, 6, 576*1152)
    srd(a, 20, 8, 8*L.XNSTRIDE, add=L.XN)
    srd(a, 24, 8, 576*1152, add=L.WOF)
    a.e(f"s_cmp_ge_u32 s2, {NLN}")
    a.e("s_cbranch_scc1 K0_wo")
    a.e("s_lshl_b32 s3, s2, 3")
    a.e("s_mov_b32 s32, 0")
    a.e("v_lshlrev_b32 v3, 1, v2")
    a.e("v_lshrrev_b32 v4, 5, v1")
    a.e("v_add3_u32 v3, v3, v4, s3")
    a.e("v_and_b32 v4, 31, v1")
    a.e("v_mul_u32_u24 v5, 1152, v3")
    a.e("v_lshl_add_u32 v5, v4, 4, v5")
    a.e("v_lshrrev_b32 v6, 5, v3")
    a.e("v_mul_u32_u24 v6, 36864, v6")
    a.e("v_and_b32 v7, 31, v3")
    a.e("v_lshl_add_u32 v6, v7, 4, v6")
    a.e("v_lshl_add_u32 v6, v4, 9, v6")
    a.e("v_mov_b32 v8, 0")
    a.e("v_mov_b32 v9, 0")
    a.e("v_cmp_gt_u32 vcc, 24, v4")
    a.e("s_and_saveexec_b64 s[28:29], vcc")
    for i in range(3):
        a.e(f"buffer_load_dwordx4 {vr(12+4*i,4)}, v5, s[12:15], 0 offen offset:{384*i}")
    a.e("s_waitcnt vmcnt(0)")
    for i in range(12):
        a.e(f"v_lshlrev_b32 v{32+2*i}, 16, v{12+i}")
        a.e(f"v_and_b32 v{33+2*i}, 0xffff0000, v{12+i}")
    a.e("v_add_f32 v8, v32, v33")
    for i in range(2, 24):
        a.e(f"v_add_f32 v8, v8, v{32+i}")
    a.e("s_mov_b64 exec, s[28:29]")
    def reduce32(r):
        for m in ["quad_perm:[1,0,3,2]", "quad_perm:[2,3,0,1]", "row_half_mirror", "row_mirror"]:
            a.e("s_nop 1")
            a.e(f"v_add_f32_dpp v{r}, v{r}, v{r} {m} row_mask:0xf bank_mask:0xf")
        a.e("s_nop 1")
        a.e(f"ds_swizzle_b32 v10, v{r} offset:0x401F")
        a.e("s_waitcnt lgkmcnt(0)")
        a.e(f"v_add_f32 v{r}, v{r}, v10")
    a.e("s_nop 4")
    reduce32(8)
    a.e(f"v_mul_f32 v8, 0x{f2u(1.0/576):08x}, v8")
    a.e("s_and_saveexec_b64 s[28:29], vcc")
    for i in range(24):
        a.e(f"v_sub_f32 v{56+i}, v{32+i}, v8")
    for i in range(24):
        a.e(f"v_fmac_f32 v9, v{56+i}, v{56+i}")
    a.e("s_mov_b64 exec, s[28:29]")
    a.e("s_nop 4")
    reduce32(9)
    a.e(f"v_mul_f32 v9, 0x{f2u(1.0/576):08x}, v9")
    a.e("v_cvt_pk_bf16_f32 v10, v8, v9")
    a.e("v_lshlrev_b32 v8, 16, v10")
    a.e("v_and_b32 v9, 0xffff0000, v10")
    a.e(f"v_add_f32 v9, 0x{f2u(1e-5):08x}, v9")
    a.e("v_cvt_pk_bf16_f32 v9, v9, v9")
    a.e("v_lshlrev_b32 v9, 16, v9")
    a.e("v_sqrt_f32 v9, v9")
    a.e("s_nop 0")
    a.e("v_cvt_pk_bf16_f32 v9, v9, v9")
    a.e("v_lshlrev_b32 v9, 16, v9")
    a.e("v_rcp_f32 v11, v9")
    a.e("s_and_saveexec_b64 s[28:29], vcc")
    for i in range(24):
        a.e(f"v_sub_f32 v{32+i}, v{32+i}, v8")
    for i in range(12):
        a.e(f"v_cvt_pk_bf16_f32 v{12+i}, v{32+2*i}, v{33+2*i}")
    for i in range(12):
        a.e(f"v_lshlrev_b32 v{32+2*i}, 16, v{12+i}")
        a.e(f"v_and_b32 v{33+2*i}, 0xffff0000, v{12+i}")
    for i in range(24):
        a.e(f"v_mul_f32 v{56+i}, v{32+i}, v11")
    for i in range(24):
        a.e(f"v_fma_f32 v{32+i}, -v{56+i}, v9, v{32+i}")
    for i in range(24):
        a.e(f"v_fmac_f32 v{56+i}, v{32+i}, v11")
    for i in range(12):
        a.e(f"v_cvt_pk_bf16_f32 v{12+i}, v{56+2*i}, v{57+2*i}")
    a.e("s_add_u32 s30, s32, 12288")
    a.e("s_add_u32 s31, s32, 24576")
    a.e(f"buffer_store_dwordx4 {vr(12,4)}, v6, s[20:23], s32 offen{STF}")
    a.e(f"buffer_store_dwordx4 {vr(16,4)}, v6, s[20:23], s30 offen{STF}")
    a.e(f"buffer_store_dwordx4 {vr(20,4)}, v6, s[20:23], s31 offen{STF}")
    a.e("s_endpgm")
    a.lab("K0_wo")
    a.e(f"s_cmp_ge_u32 s2, {NLN+162}")
    a.e("s_cbranch_scc1 K0_done")
    a.e("v_readfirstlane_b32 s3, v2")
    a.e(f"s_sub_u32 s28, s2, {NLN}")
    a.e("s_lshl_b32 s28, s28, 2")
    a.e("s_add_u32 s28, s28, s3")
    a.e("s_mul_hi_u32 s29, s28, 0x0E38E38F")
    a.e("s_mul_i32 s30, s29, 18")
    a.e("s_sub_u32 s30, s28, s30")
    a.e("s_mul_i32 s30, s30, 36864")
    a.e("s_lshl_b32 s29, s29, 5")
    a.e("s_add_u32 s30, s30, s29")
    a.e("v_lshrrev_b32 v3, 4, v1")
    a.e("v_mul_u32_u24 v3, 9216, v3")
    a.e("v_and_b32 v4, 15, v1")
    a.e("v_lshl_add_u32 v3, v4, 1, v3")
    a.e("v_add_u32 v4, 4608, v3")
    for j in range(8):
        vo = "v3" if j < 4 else "v4"
        a.e(f"buffer_load_ushort v{16+j}, {vo}, s[16:19], s30 offen offset:{(j%4)*1152}")
    a.e("s_lshl_b32 s28, s28, 10")
    a.e("v_lshlrev_b32 v5, 4, v1")
    a.e("s_waitcnt vmcnt(0)")
    for j in range(4):
        a.e(f"v_lshl_or_b32 v{8+j}, v{17+2*j}, 16, v{16+2*j}")
    a.e(f"buffer_store_dwordx4 {vr(8,4)}, v5, s[24:27], s28 offen{STF}")
    a.lab("K0_done")
    a.e("s_endpgm")
    a.lab("K0_pf")
    if 'nopf' in OPT: a.e("s_endpgm")
    a.e("s_load_dwordx2 s[6:7], s[0:1], 32")
    a.e("s_load_dwordx2 s[8:9], s[0:1], 40")
    a.e("v_and_b32 v1, 63, v0")
    a.e("v_lshrrev_b32 v2, 6, v0")
    a.e(f"s_sub_u32 s28, s2, {K0_LNWO}")
    a.e("v_readfirstlane_b32 s3, v2")
    a.e("s_and_b32 s29, s28, 7")
    a.e("s_lshr_b32 s28, s28, 3")
    a.e("s_lshl_b32 s28, s28, 2")
    a.e("s_add_u32 s28, s28, s3")
    a.e("s_waitcnt lgkmcnt(0)")
    srd(a, 12, 6, 576*9216)
    a.e("s_cmp_ge_u32 s28, 32")
    a.e("s_cselect_b32 s12, s8, s12")
    a.e("s_cselect_b32 s13, s9, s13")
    a.e("s_bfe_u32 s30, s28, 0x20003")
    a.e("s_and_b32 s31, s28, 7")
    a.e(f"s_mul_i32 s31, s31, {72*9216}")
    a.e("s_lshr_b32 s32, s30, 1")
    a.e("s_lshl_b32 s33, s29, 1")
    a.e("s_add_u32 s32, s32, s33")
    a.e("s_mul_i32 s32, s32, 9")
    a.e("s_and_b32 s30, s30, 1")
    a.e("s_mul_i32 s30, s30, 5")
    a.e("s_add_u32 s32, s32, s30")
    a.e("s_lshl_b32 s32, s32, 6")
    a.e("s_add_u32 s31, s31, s32")
    a.e("v_lshrrev_b32 v3, 3, v1")
    a.e("v_mul_u32_u24 v3, 9216, v3")
    a.e("v_and_b32 v4, 7, v1")
    a.e("v_lshl_add_u32 v3, v4, 4, v3")
    for i in range(9):
        a.e(f"buffer_load_dwordx4 {vr(8+4*i,4)}, v3, s[12:15], s31 offen")
        a.e(f"s_add_u32 s31, s31, {8*9216}")
    a.e("s_endpgm")
    return a.text(), kdesc("ln_kernel", 80, 40)
```

```python
from gen_common import *

def gen_k1(OPT=set()):
    STF = stf(OPT, 1)
    a = A()
    kheader(a, "gemm1_kernel")
    ACC = [[[0, 16], [32, 48]], [[64, 80], [96, 112]]]
    XV = 128
    WF = 160
    T = [192, 200]
    vLane = 208
    vRd = [[209, 210], [211, 212]]
    vDmaF, vDmaQ, vDma, vHst, vQst, vC1, vTmp, vTmp2, vStamp = 213, 214, 215, 216, 217, 218, 219, 220, 221
    NVA = 228
    def xfrag(rt, s):
        idx = rt * 36 + s
        if idx < 64: return f"a[{4*idx}:{4*idx+3}]"
        return vr(XV + 4 * (idx - 64), 4)
    STG = 24576
    sW, sQ, sXN, sH, sQKV, sF = 12, 16, 20, 24, 28, 32
    (sw, smt, scg, sNF, sfb0, sQ1G, sQ1U, sQ2G, sQ2U, sQ1w, sQ2w, sNQ, sHoff, sHoff2, sQrow, st0, st1, st2, sLdsW, sImg,
     sQoG, sQoU, sQoG2, sQoU2, sFB, sSrc, sStr, sLoop, sPar) = range(36, 65)
    sM = 66
    sD = 80; sPf = 65
    vPf = 222; PFD = 224

    a.e("s_cmp_ge_u32 s2, 256")
    a.e("s_cbranch_scc1 K1_done")
    if 'stamp' in OPT:
        a.e("s_memtime s[70:71]")
        a.e("s_memrealtime s[86:87]")
        a.e("s_mov_b32 s79, 0")
    def stamp():
        if 'stamp' in OPT:
            a.e("s_memtime s[72:73]")
            a.e("s_waitcnt lgkmcnt(0)")
            lt.clear()
            a.e("s_sub_u32 s72, s72, s70")
            a.e("s_mov_b32 m0, s79")
            a.e("s_nop 0")
            a.e(f"v_writelane_b32 v{vStamp}, s72, m0")
            a.e("s_add_u32 s79, s79, 1")
    def dump():
        if 'stamp' in OPT:
            stamp()
            a.e("s_memrealtime s[88:89]")
            a.e("s_waitcnt lgkmcnt(0)")
            a.e(f"v_writelane_b32 v{vStamp}, s86, 62")
            a.e(f"v_writelane_b32 v{vStamp}, s88, 63")
            a.e(f"s_add_u32 s76, s10, {L.DBG}"); a.e("s_addc_u32 s77, s11, 0"); a.e("s_mov_b32 s78, 0x100000"); a.e("s_mov_b32 s79, 0x00020000")
            a.e("s_lshl_b32 s74, s2, 3")
            a.e(f"s_add_u32 s74, s74, s{sw}")
            a.e("s_lshl_b32 s74, s74, 8")
            a.e(f"v_lshlrev_b32 v{vTmp}, 2, v{vLane}")
            a.e(f"buffer_store_dword v{vStamp}, v{vTmp}, s[76:79], s74 offen{STF}")
    a.e("s_load_dwordx2 s[4:5], s[0:1], 8")
    a.e("s_load_dwordx2 s[6:7], s[0:1], 32")
    a.e("s_load_dwordx2 s[8:9], s[0:1], 40")
    a.e("s_load_dwordx2 s[10:11], s[0:1], 72")
    a.e("s_load_dwordx2 s[68:69], s[0:1], 48")
    a.e(f"v_and_b32 v{vLane}, 63, v0")
    a.e(f"v_lshrrev_b32 v{vTmp}, 6, v0")
    a.e("s_nop 0")
    a.e(f"v_readfirstlane_b32 s{sw}, v{vTmp}")
    lm = 2 if 'm4' in OPT else (1 if 'm2' in OPT else 3)
    a.e(f"s_and_b32 s{st0}, s2, 7")
    a.e(f"s_lshr_b32 s{st1}, s2, 3")
    a.e(f"s_and_b32 s{smt}, s{st1}, {(1<<lm)-1}")
    a.e(f"s_and_b32 s{st2}, s{st0}, {(8>>lm)-1}")
    a.e(f"s_lshl_b32 s{st2}, s{st2}, {lm}")
    a.e(f"s_add_u32 s{smt}, s{smt}, s{st2}")
    a.e(f"s_lshr_b32 s{st1}, s{st1}, {lm}")
    a.e(f"s_lshr_b32 s{st0}, s{st0}, {3-lm}")
    a.e(f"s_lshl_b32 s{scg}, s{st0}, {5-lm}")
    a.e(f"s_add_u32 s{scg}, s{scg}, s{st1}")
    a.e(f"s_lshr_b32 s{st0}, s{scg}, 1")
    a.e(f"s_and_b32 s{st1}, s{scg}, 1")
    a.e(f"s_mul_i32 s{sfb0}, s{st0}, 9")
    a.e(f"s_mul_i32 s{st2}, s{st1}, 5")
    a.e(f"s_add_u32 s{sfb0}, s{sfb0}, s{st2}")
    a.e(f"s_sub_u32 s{sNF}, 5, s{st1}")
    a.e(f"s_min_u32 s{st2}, s{st0}, 6")
    a.e(f"s_mul_i32 s{sQ1G}, s{st0}, 3")
    a.e(f"s_add_u32 s{sQ1G}, s{sQ1G}, s{st2}")
    a.e(f"s_cmp_lt_u32 s{st0}, 6")
    a.e(f"s_cselect_b32 s{st2}, 3, 2")
    a.e(f"s_cmp_eq_u32 s{st1}, 1")
    a.e(f"s_cselect_b32 s{sNQ}, s{st2}, 1")
    a.e(f"s_cselect_b32 s{st2}, 0, s{st2}")
    a.e(f"s_add_u32 s{sQ1G}, s{sQ1G}, s{st2}")
    a.e(f"s_lshl_b32 s{sQ1G}, s{sQ1G}, 6")
    a.e(f"s_cmp_eq_u32 s{st1}, 1")
    a.e(f"s_cselect_b32 s{st2}, 64, 32")
    a.e(f"s_add_u32 s{sQ1U}, s{sQ1G}, s{st2}")
    a.e(f"s_add_u32 s{sQ2G}, s{sQ1G}, 128")
    a.e(f"s_add_u32 s{sQ2U}, s{sQ2G}, 32")
    a.e(f"s_lshr_b32 s{sImg}, s{sw}, 1")
    a.e(f"s_cmp_eq_u32 s{sImg}, 1")
    a.e(f"s_cselect_b32 s{sQ1w}, s{sQ1U}, s{sQ1G}")
    a.e(f"s_cselect_b32 s{sQ2w}, s{sQ2U}, s{sQ2G}")
    a.e("s_waitcnt lgkmcnt(0)")
    a.e(f"s_cselect_b32 s{sW}, s8, s6")
    a.e(f"s_cselect_b32 s{sW+1}, s9, s7")
    a.e(f"s_mov_b32 s{sW+2}, {576*9216}")
    a.e(f"s_mov_b32 s{sW+3}, 0x00020000")
    srd(a, sQ, 4, 576*3456)
    srd(a, sD, 68, 4608*1152)
    a.e(f"s_and_b32 s{st0}, s2, 7")
    a.e(f"s_lshr_b32 s{st0}, s{st0}, 1")
    a.e(f"s_mul_i32 s{sPf}, s{st0}, {1152*1152}")
    a.e(f"s_lshr_b32 s{st0}, s2, 3")
    a.e(f"s_lshl_b32 s{st0}, s{st0}, 2")
    a.e(f"s_add_u32 s{st0}, s{st0}, s{sw}")
    a.e(f"s_mul_i32 s{st0}, s{st0}, {12*1024}")
    a.e(f"s_add_u32 s{sPf}, s{sPf}, s{st0}")
    srd(a, sXN, 10, 8*L.XNSTRIDE, add=L.XN)
    srd(a, sH, 10, 2048*9216, add=L.H)
    srd(a, sQKV, 10, 2048*3456, add=L.QKV)
    a.e(f"v_lshrrev_b32 v{vTmp}, 2, v{vLane}")
    a.e(f"v_and_b32 v{vTmp2}, 3, v{vLane}")
    a.e(f"s_lshl_b32 s{st0}, s{sImg}, 1")
    a.e(f"v_xor_b32 v{vTmp2}, s{st0}, v{vTmp2}")
    a.e(f"v_lshlrev_b32 v{vTmp2}, 4, v{vTmp2}")
    a.e(f"v_mul_u32_u24 v{vDmaF}, 9216, v{vTmp}")
    a.e(f"v_add_u32 v{vDmaF}, v{vDmaF}, v{vTmp2}")
    a.e(f"v_mul_u32_u24 v{vDmaQ}, 3456, v{vTmp}")
    a.e(f"v_add_u32 v{vDmaQ}, v{vDmaQ}, v{vTmp2}")
    a.e(f"s_mul_i32 s{sLdsW}, s{sImg}, 12288")
    a.e(f"s_and_b32 s{sPar}, s{sw}, 1")
    a.e(f"s_lshl_b32 s{st1}, s{sPar}, 10")
    a.e(f"s_add_u32 s{sLdsW}, s{sLdsW}, s{st1}")
    a.e(f"s_mov_b32 s{sFB}, -1")

    vt = VmTracker(a)
    lt = LgkmTracker(a)

    def next_fetch():
        ops = []
        ops.append(f"s_add_u32 s{sFB}, s{sFB}, 1")
        ops.append(f"s_cmp_eq_u32 s{sFB}, s{sNF}")
        ops.append(f"s_cselect_b32 s{st0}, s{sQ1w}, s{sQ2w}")
        ops.append(f"s_add_u32 s{st1}, s{sFB}, s{sfb0}")
        ops.append(f"s_lshl_b32 s{st1}, s{st1}, 6")
        ops.append(f"s_cmp_lt_u32 s{sFB}, s{sNF}")
        ops.append(f"s_cselect_b32 s{st0}, s{st1}, s{st0}")
        ops.append(f"s_cselect_b32 s{sF}, s{sW}, s{sQ}")
        ops.append(f"s_cselect_b32 s{sF+1}, s{sW+1}, s{sQ+1}")
        ops.append(f"s_cselect_b32 s{sF+2}, s{sW+2}, s{sQ+2}")
        ops.append(f"s_mov_b32 s{sF+3}, 0x00020000")
        ops.append(f"s_cselect_b32 s{sStr}, 8, 3")
        ops.append(f"s_cselect_b64 s[{sM}:{sM+1}], -1, 0")
        ops.append(f"s_mul_i32 s{sStr}, s{sStr}, 18432")
        ops.append(f"s_mul_i32 s{st1}, s{sStr}, s{sPar}")
        ops.append(f"s_add_u32 s{sSrc}, s{st0}, s{st1}")
        ops.append(f"s_lshl_b32 s{sStr}, s{sStr}, 1")
        ops.append(f"v_cndmask_b32 v{vDma}, v{vDmaQ}, v{vDmaF}, s[{sM}:{sM+1}]")
        return ops

    def dma_piece(slot, i):
        if 'nodma' in OPT: return []
        return [f"s_add_u32 m0, s{sLdsW}, {slot*STG + i*2048}",
                f"s_nop 0",
                ("VM", f"buffer_load_dwordx4 v{vDma}, {sr(sF,4)}, s{sSrc} offen lds", ("dma", slot)),
                f"s_add_u32 s{sSrc}, s{sSrc}, s{sStr}"]

    def emit(o):
        if isinstance(o, tuple):
            if o[0] == "VM":
                vt.issue(o[1], o[2])
        else:
            a.e(o)

    def xload(s):
        ops = []
        for rt in range(2):
            ops.append(("VM", f"buffer_load_dwordx4 {xfrag(rt,s)}, v{vTmp}, {sr(sXN,4)}, s{st2 if rt==0 else sLoop} offen offset:{(s%4)*1024}", ("x", s)))
        if s % 4 == 3:
            ops.append(f"s_add_u32 s{st2}, s{st2}, 4096")
            ops.append(f"s_add_u32 s{sLoop}, s{sLoop}, 4096")
        return ops

    for o in next_fetch(): a.e(o)
    for i in range(6):
        for o in dma_piece(0, i): emit(o)
    a.e(f"s_lshl_b32 s{st2}, s{smt}, 3")
    a.e(f"s_lshl_b32 s{st1}, s{sw}, 1")
    a.e(f"s_add_u32 s{st2}, s{st2}, s{st1}")
    a.e(f"s_mul_i32 s{st2}, s{st2}, 36864")
    a.e(f"s_add_u32 s{sLoop}, s{st2}, 36864")
    a.e(f"v_lshlrev_b32 v{vTmp}, 4, v{vLane}")
    for s in range(12):
        for o in xload(s): emit(o)
    for i in range(6):
        for o in dma_piece(1, i): emit(o)
    for s in range(12, 24):
        for o in xload(s): emit(o)
    a.e(f"v_lshrrev_b32 v{vTmp2}, 4, v{vLane}")
    a.e(f"v_and_b32 v{vTmp2}, 1, v{vTmp2}")
    a.e(f"v_mul_u32_u24 v{vRd[0][0]}, {12288+32}, v{vTmp2}")
    a.e(f"v_lshrrev_b32 v{vTmp2}, 5, v{vLane}")
    a.e(f"v_lshl_add_u32 v{vRd[0][0]}, v{vTmp2}, 9, v{vRd[0][0]}")
    a.e(f"v_bfe_u32 v{vTmp2}, v{vLane}, 2, 2")
    a.e(f"v_lshl_add_u32 v{vRd[0][0]}, v{vTmp2}, 6, v{vRd[0][0]}")
    a.e(f"v_and_b32 v{vTmp2}, 3, v{vLane}")
    a.e(f"v_lshl_add_u32 v{vRd[0][0]}, v{vTmp2}, 3, v{vRd[0][0]}")
    a.e(f"v_xor_b32 v{vRd[0][1]}, 32, v{vRd[0][0]}")
    a.e(f"v_add_u32 v{vRd[1][0]}, {3*STG}, v{vRd[0][0]}")
    a.e(f"v_add_u32 v{vRd[1][1]}, {3*STG}, v{vRd[0][1]}")
    a.e(f"v_bfe_u32 v{vTmp2}, v{vLane}, 4, 1")
    a.e(f"v_mul_u32_u24 v{vHst}, 147456, v{vTmp2}")
    a.e(f"v_lshrrev_b32 v{vTmp2}, 5, v{vLane}")
    a.e(f"v_lshl_add_u32 v{vHst}, v{vTmp2}, 8, v{vHst}")
    a.e(f"v_and_b32 v{vTmp2}, 15, v{vLane}")
    a.e(f"v_lshl_add_u32 v{vHst}, v{vTmp2}, 4, v{vHst}")
    a.e(f"v_and_b32 v{vTmp2}, 31, v{vLane}")
    a.e(f"v_mul_u32_u24 v{vQst}, 3456, v{vTmp2}")
    a.e(f"v_lshrrev_b32 v{vTmp2}, 5, v{vLane}")
    a.e(f"v_lshl_add_u32 v{vQst}, v{vTmp2}, 3, v{vQst}")
    a.e(f"v_mov_b32 v{vC1}, 0x{f2u(GC1):08x}")
    a.e(f"v_lshlrev_b32 v{vPf}, 4, v{vLane}")
    a.e(f"s_lshl_b32 s{st0}, s{smt}, 4")
    a.e(f"s_lshl_b32 s{st1}, s{sw}, 2")
    a.e(f"s_add_u32 s{st0}, s{st0}, s{st1}")
    a.e(f"s_mul_i32 s{sHoff}, s{st0}, 147456")
    a.e(f"s_lshl_b32 s{st1}, s{sfb0}, 10")
    a.e(f"s_add_u32 s{sHoff}, s{sHoff}, s{st1}")
    a.e(f"s_add_u32 s{sHoff2}, s{sHoff}, {2*147456}")
    a.e(f"s_lshl_b32 s{st0}, s{smt}, 8")
    a.e(f"s_lshl_b32 s{st1}, s{sw}, 6")
    a.e(f"s_add_u32 s{st0}, s{st0}, s{st1}")
    a.e(f"s_mul_i32 s{sQrow}, s{st0}, 3456")
    stamp()
    vt.wait_tag(("dma", 0))
    a.e("s_barrier")
    stamp()

    def rd(par, s, c, half=None):
        if 'noread' in OPT: return
        w = WF + 8 * (s % 4) + 4 * c
        off = (s // 12) * STG + (s % 12) * 1024
        if half in (None, 0):
            lt.issue(f"ds_read_b64_tr_b16 {vr(w,2)}, v{vRd[par][c]} offset:{off}", None)
        if half in (None, 1):
            lt.issue(f"ds_read_b64_tr_b16 {vr(w+2,2)}, v{vRd[par][c]} offset:{off+256}", ("w", s % 4, c))

    def epiF(st_, pf=False):
        ops = []
        k = 0
        for c in range(2):
            for rt in range(2):
                P = ACC[st_][c][rt]; Tt = T[k % 2]; k += 1
                for r in range(8): ops.append(f"v_mul_f32 v{Tt+r}, v{P+r}, v{P+r}")
                for r in range(8): ops.append(f"v_mul_f32 v{P+8+r}, v{P+r}, v{P+8+r}")
                for r in range(8): ops.append(f"v_fmaak_f32 v{Tt+r}, v{vC1}, v{Tt+r}, 0x{f2u(GC0):08x}")
                for r in range(8): ops.append(f"v_mul_f32 v{Tt+r}, v{Tt+r}, v{P+r}")
                for r in range(8): ops.append(f"v_exp_f32 v{Tt+r}, v{Tt+r}")
                for r in range(8): ops.append(f"v_add_f32 v{Tt+r}, 1.0, v{Tt+r}")
                for r in range(8): ops.append(f"v_rcp_f32 v{Tt+r}, v{Tt+r}")
                for r in range(8): ops.append(f"v_mul_f32 v{P+8+r}, v{P+8+r}, v{Tt+r}")
                for r in range(4): ops.append(f"v_cvt_pk_bf16_f32 v{Tt+r}, v{P+8+2*r}, v{P+9+2*r}")
                so = sHoff if rt == 0 else sHoff2
                ops.append(("VM", f"buffer_store_dwordx4 {vr(Tt,4)}, v{vHst}, {sr(sH,4)}, s{so} offen offset:{c*512}{STF}", None))
        ops.append(f"s_add_u32 s{sHoff}, s{sHoff}, 1024")
        ops.append(f"s_add_u32 s{sHoff2}, s{sHoff2}, 1024")
        if pf and 'nopfd' not in OPT:
            n = len(ops)
            for i in range(3):
                ops.insert((n * (2*i+1)) // 7, ("VM", f"buffer_load_dwordx4 {vr(PFD,4)}, v{vPf}, {sr(sD,4)}, s{sPf} offen offset:{i*1024}", None))
            ops.append(f"s_add_u32 s{sPf}, s{sPf}, 3072")
        return ops

    def epiQ(st_, nch):
        ops = []
        k = 0
        for c in range(nch):
            for rt in range(2):
                P = ACC[st_][c][rt]; Tt = T[k % 2]; k += 1
                for r in range(8): ops.append(f"v_cvt_pk_bf16_f32 v{Tt+r}, v{P+2*r}, v{P+2*r+1}")
                for rg in range(4):
                    so = [[sQoG, sQoU], [sQoG2, sQoU2]][rt][rg // 2]
                    ops.append(("VM", f"buffer_store_dwordx2 {vr(Tt+2*rg,2)}, v{vQst}, {sr(sQKV,4)}, s{so} offen offset:{c*32+(rg%2)*16}", None))
        return ops

    def setq(g, u):
        a.e(f"s_add_u32 s{sQoG}, s{sQrow}, s{g}")
        a.e(f"s_add_u32 s{sQoU}, s{sQrow}, s{u}")
        a.e(f"s_add_u32 s{sQoG2}, s{sQoG}, {32*3456}")
        a.e(f"s_add_u32 s{sQoU2}, s{sQoU}, {32*3456}")

    def body(par, pend, nch=2, first=False, last=False, next_nch=2):
        pend = list(pend)
        if 'noepi' in OPT: pend = [o for o in pend if isinstance(o, str) and o.startswith("s_")]
        nm = 2 * nch
        def cost(o):
            t = o[1] if isinstance(o, tuple) else o
            if t.startswith("v_exp") or t.startswith("v_rcp"): return 2.0
            if t.startswith("s_"): return 0.5
            return 1.0
        totc = sum(cost(o) for o in pend)
        ngaps = 34 * nm
        done_c = [0.0]; gap_i = [0]
        extra = []
        if first:
            for i in range(6): extra.append(dma_piece(2, i))
            for s in range(24, 36): extra.append(xload(s))
            extra.append(next_fetch())
            for sl in (3, 4):
                for i in range(6): extra.append(dma_piece(sl, i))
            for c in range(nch):
                for s in range(3): pass
            for s in range(3):
                for c in range(nch): rd(par, s, c)
        dq = []
        for s in range(36):
            stg = s // 12; ks = s % 12
            sn = s + 3
            rq = []
            if sn < 36:
                for c in range(nch):
                    for h in range(2): rq.append((par, sn, c, h))
            elif not last:
                for c in range(next_nch):
                    for h in range(2): rq.append((par ^ 1, sn - 36, c, h))
            if first:
                vt.wait_tag(("x", s))
            for m in range(nm):
                c = m // 2; rt = m % 2
                if rt == 0: lt.wait_tag(("w", s % 4, c))
                P = ACC[par][c][rt]
                cc = "0" if s == 0 else vr(P, 16)
                a.e(f"v_mfma_f32_32x32x16_bf16 {vr(P,16)}, {vr(WF+8*(s%4)+4*c,4)}, {xfrag(rt,s)}, {cc}")
                nr = -(-len(rq) // (nm - m))
                for _ in range(nr): rd(*rq.pop(0))
                if s >= 1:
                    gap_i[0] += 1
                    while pend and done_c[0] < totc * gap_i[0] / ngaps:
                        o = pend.pop(0); done_c[0] += cost(o); emit(o)
                if first and extra:
                    for o in extra.pop(0): emit(o)
                if dq and m % 2 == 1:
                    for o in dq.pop(0): emit(o)
            bar_ks = 8 if (first and stg == 0) else 1
            if ks == bar_ks and not (last and stg == 2) :
                if first:
                    assert not extra
                    vt.wait_tag(("dma", (stg + 1) % 6))
                else:
                    assert not dq
                    a.e(f"s_waitcnt vmcnt({12 if (last and stg == 1) else 18})")
                if 'nobar' not in OPT: a.e("s_barrier")
                if not last:
                    slot = (3 * par + stg + 5) % 6
                    if stg == 1: dq.append(next_fetch())
                    for i in range(6): dq.append(dma_piece(slot, i))
        assert not pend and not dq, (len(pend), len(dq))

    body(0, [], first=True)
    stamp()
    a.e(f"s_mov_b32 s{sLoop}, 0")
    snap = lt.snapshot()
    a.lab("K1_loop")
    body(1, epiF(0, True))
    stamp()
    body(0, epiF(1, True))
    stamp()
    if 'stamp' not in OPT: assert lt.snapshot() == snap
    a.e(f"s_add_u32 s{sLoop}, s{sLoop}, 1")
    a.e(f"s_cmp_lt_u32 s{sLoop}, 2")
    a.e("s_cbranch_scc1 K1_loop")
    snap = lt.snapshot()
    setq(sQ1G, sQ1U)
    a.e(f"s_cmp_eq_u32 s{sNQ}, 2")
    a.e("s_cbranch_scc1 K1_tailB2")
    a.e(f"s_cmp_eq_u32 s{sNQ}, 3")
    a.e("s_cbranch_scc1 K1_B3")
    body(1, epiF(0), nch=1, last=True)
    a.e("s_branch K1_tailS")
    a.lab("K1_B3")
    lt.restore(snap)
    body(1, epiQ(0, 2), nch=1, last=True)
    setq(sQ2G, sQ2U)
    a.lab("K1_tailS")
    dump()
    a.e("s_nop 15")
    for o in epiQ(1, 1): emit(o)
    a.e("s_endpgm")
    a.lab("K1_tailB2")
    dump()
    a.e("s_nop 15")
    for o in epiQ(0, 2): emit(o)
    a.lab("K1_done")
    a.e("s_endpgm")
    d = f""".p2align 6
.amdhsa_kernel gemm1_kernel
  .amdhsa_next_free_vgpr {NVA+256}
  .amdhsa_next_free_sgpr 90
  .amdhsa_accum_offset {NVA}
  .amdhsa_group_segment_fixed_size 0
  .amdhsa_kernarg_size 80
  .amdhsa_user_sgpr_count 2
  .amdhsa_user_sgpr_kernarg_segment_ptr 1
  .amdhsa_system_sgpr_workgroup_id_x 1
.end_amdhsa_kernel
"""
    return a.text(), d
```

```python
from gen_common import *

def gen_k1(OPT=set()):
    STF = stf(OPT, 1)
    a = A()
    kheader(a, "gemm1_kernel")
    ACC = [[[0, 16], [32, 48]], [[64, 80], [96, 112]]]
    XV = 128
    WF = 160
    T = [192, 200]
    vLane = 208
    vRd = [[209, 210], [211, 212]]
    vDmaF, vDmaQ, vDma, vHst, vQst, vC1, vTmp, vTmp2, vStamp = 213, 214, 215, 216, 217, 218, 219, 220, 221
    NVA = 228
    def xfrag(rt, s):
        idx = rt * 36 + s
        if idx < 64: return f"a[{4*idx}:{4*idx+3}]"
        return vr(XV + 4 * (idx - 64), 4)
    STG = 24576
    sW, sQ, sXN, sH, sQKV, sF = 12, 16, 20, 24, 28, 32
    (sw, smt, scg, sNF, sfb0, sQ1G, sQ1U, sQ2G, sQ2U, sQ1w, sQ2w, sNQ, sHoff, sHoff2, sQrow, st0, st1, st2, sLdsW, sImg,
     sQoG, sQoU, sQoG2, sQoU2, sFB, sSrc, sStr, sLoop, sPar) = range(36, 65)
    sM = 66
    sD = 80; sPf = 65
    vPf = 222; PFD = 224

    a.e("s_cmp_ge_u32 s2, 256")
    a.e("s_cbranch_scc1 K1_done")
    if 'stamp' in OPT:
        a.e("s_memtime s[70:71]")
        a.e("s_memrealtime s[86:87]")
        a.e("s_mov_b32 s79, 0")
    def stamp():
        if 'stamp' in OPT:
            a.e("s_memtime s[72:73]")
            a.e("s_waitcnt lgkmcnt(0)")
            lt.clear()
            a.e("s_sub_u32 s72, s72, s70")
            a.e("s_mov_b32 m0, s79")
            a.e("s_nop 0")
            a.e(f"v_writelane_b32 v{vStamp}, s72, m0")
            a.e("s_add_u32 s79, s79, 1")
    def dump():
        if 'stamp' in OPT:
            stamp()
            a.e("s_memrealtime s[88:89]")
            a.e("s_waitcnt lgkmcnt(0)")
            a.e(f"v_writelane_b32 v{vStamp}, s86, 62")
            a.e(f"v_writelane_b32 v{vStamp}, s88, 63")
            a.e(f"s_add_u32 s76, s10, {L.DBG}"); a.e("s_addc_u32 s77, s11, 0"); a.e("s_mov_b32 s78, 0x100000"); a.e("s_mov_b32 s79, 0x00020000")
            a.e("s_lshl_b32 s74, s2, 3")
            a.e(f"s_add_u32 s74, s74, s{sw}")
            a.e("s_lshl_b32 s74, s74, 8")
            a.e(f"v_lshlrev_b32 v{vTmp}, 2, v{vLane}")
            a.e(f"buffer_store_dword v{vStamp}, v{vTmp}, s[76:79], s74 offen{STF}")
    a.e("s_load_dwordx2 s[4:5], s[0:1], 8")
    a.e("s_load_dwordx2 s[6:7], s[0:1], 32")
    a.e("s_load_dwordx2 s[8:9], s[0:1], 40")
    a.e("s_load_dwordx2 s[10:11], s[0:1], 72")
    a.e("s_load_dwordx2 s[68:69], s[0:1], 48")
    a.e(f"v_and_b32 v{vLane}, 63, v0")
    a.e(f"v_lshrrev_b32 v{vTmp}, 6, v0")
    a.e("s_nop 0")
    a.e(f"v_readfirstlane_b32 s{sw}, v{vTmp}")
    lm = 2 if 'm4' in OPT else (1 if 'm2' in OPT else 3)
    a.e(f"s_and_b32 s{st0}, s2, 7")
    a.e(f"s_lshr_b32 s{st1}, s2, 3")
    a.e(f"s_and_b32 s{smt}, s{st1}, {(1<<lm)-1}")
    a.e(f"s_and_b32 s{st2}, s{st0}, {(8>>lm)-1}")
    a.e(f"s_lshl_b32 s{st2}, s{st2}, {lm}")
    a.e(f"s_add_u32 s{smt}, s{smt}, s{st2}")
    a.e(f"s_lshr_b32 s{st1}, s{st1}, {lm}")
    a.e(f"s_lshr_b32 s{st0}, s{st0}, {3-lm}")
    a.e(f"s_lshl_b32 s{scg}, s{st0}, {5-lm}")
    a.e(f"s_add_u32 s{scg}, s{scg}, s{st1}")
    a.e(f"s_lshr_b32 s{st0}, s{scg}, 1")
    a.e(f"s_and_b32 s{st1}, s{scg}, 1")
    a.e(f"s_mul_i32 s{sfb0}, s{st0}, 9")
    a.e(f"s_mul_i32 s{st2}, s{st1}, 5")
    a.e(f"s_add_u32 s{sfb0}, s{sfb0}, s{st2}")
    a.e(f"s_sub_u32 s{sNF}, 5, s{st1}")
    a.e(f"s_min_u32 s{st2}, s{st0}, 6")
    a.e(f"s_mul_i32 s{sQ1G}, s{st0}, 3")
    a.e(f"s_add_u32 s{sQ1G}, s{sQ1G}, s{st2}")
    a.e(f"s_cmp_lt_u32 s{st0}, 6")
    a.e(f"s_cselect_b32 s{st2}, 3, 2")
    a.e(f"s_cmp_eq_u32 s{st1}, 1")
    a.e(f"s_cselect_b32 s{sNQ}, s{st2}, 1")
    a.e(f"s_cselect_b32 s{st2}, 0, s{st2}")
    a.e(f"s_add_u32 s{sQ1G}, s{sQ1G}, s{st2}")
    a.e(f"s_lshl_b32 s{sQ1G}, s{sQ1G}, 6")
    a.e(f"s_cmp_eq_u32 s{st1}, 1")
    a.e(f"s_cselect_b32 s{st2}, 64, 32")
    a.e(f"s_add_u32 s{sQ1U}, s{sQ1G}, s{st2}")
    a.e(f"s_add_u32 s{sQ2G}, s{sQ1G}, 128")
    a.e(f"s_add_u32 s{sQ2U}, s{sQ2G}, 32")
    a.e(f"s_lshr_b32 s{sImg}, s{sw}, 1")
    a.e(f"s_cmp_eq_u32 s{sImg}, 1")
    a.e(f"s_cselect_b32 s{sQ1w}, s{sQ1U}, s{sQ1G}")
    a.e(f"s_cselect_b32 s{sQ2w}, s{sQ2U}, s{sQ2G}")
    a.e("s_waitcnt lgkmcnt(0)")
    a.e(f"s_cselect_b32 s{sW}, s8, s6")
    a.e(f"s_cselect_b32 s{sW+1}, s9, s7")
    a.e(f"s_mov_b32 s{sW+2}, {576*9216}")
    a.e(f"s_mov_b32 s{sW+3}, 0x00020000")
    srd(a, sQ, 4, 576*3456)
    srd(a, sD, 68, 4608*1152)
    a.e(f"s_and_b32 s{st0}, s2, 7")
    a.e(f"s_lshr_b32 s{st0}, s{st0}, 1")
    a.e(f"s_mul_i32 s{sPf}, s{st0}, {1152*1152}")
    a.e(f"s_lshr_b32 s{st0}, s2, 3")
    a.e(f"s_lshl_b32 s{st0}, s{st0}, 2")
    a.e(f"s_add_u32 s{st0}, s{st0}, s{sw}")
    a.e(f"s_mul_i32 s{st0}, s{st0}, {12*1024}")
    a.e(f"s_add_u32 s{sPf}, s{sPf}, s{st0}")
    srd(a, sXN, 10, 8*L.XNSTRIDE, add=L.XN)
    srd(a, sH, 10, 2048*9216, add=L.H)
    srd(a, sQKV, 10, 2048*3456, add=L.QKV)
    a.e(f"v_lshrrev_b32 v{vTmp}, 2, v{vLane}")
    a.e(f"v_and_b32 v{vTmp2}, 3, v{vLane}")
    a.e(f"s_lshl_b32 s{st0}, s{sImg}, 1")
    a.e(f"v_xor_b32 v{vTmp2}, s{st0}, v{vTmp2}")
    a.e(f"v_lshlrev_b32 v{vTmp2}, 4, v{vTmp2}")
    a.e(f"v_mul_u32_u24 v{vDmaF}, 9216, v{vTmp}")
    a.e(f"v_add_u32 v{vDmaF}, v{vDmaF}, v{vTmp2}")
    a.e(f"v_mul_u32_u24 v{vDmaQ}, 3456, v{vTmp}")
    a.e(f"v_add_u32 v{vDmaQ}, v{vDmaQ}, v{vTmp2}")
    a.e(f"s_mul_i32 s{sLdsW}, s{sImg}, 12288")
    a.e(f"s_and_b32 s{sPar}, s{sw}, 1")
    a.e(f"s_lshl_b32 s{st1}, s{sPar}, 10")
    a.e(f"s_add_u32 s{sLdsW}, s{sLdsW}, s{st1}")
    a.e(f"s_mov_b32 s{sFB}, -1")

    vt = VmTracker(a)
    lt = LgkmTracker(a)

    def next_fetch():
        ops = []
        ops.append(f"s_add_u32 s{sFB}, s{sFB}, 1")
        ops.append(f"s_cmp_eq_u32 s{sFB}, s{sNF}")
        ops.append(f"s_cselect_b32 s{st0}, s{sQ1w}, s{sQ2w}")
        ops.append(f"s_add_u32 s{st1}, s{sFB}, s{sfb0}")
        ops.append(f"s_lshl_b32 s{st1}, s{st1}, 6")
        ops.append(f"s_cmp_lt_u32 s{sFB}, s{sNF}")
        ops.append(f"s_cselect_b32 s{st0}, s{st1}, s{st0}")
        ops.append(f"s_cselect_b32 s{sF}, s{sW}, s{sQ}")
        ops.append(f"s_cselect_b32 s{sF+1}, s{sW+1}, s{sQ+1}")
        ops.append(f"s_cselect_b32 s{sF+2}, s{sW+2}, s{sQ+2}")
        ops.append(f"s_mov_b32 s{sF+3}, 0x00020000")
        ops.append(f"s_cselect_b32 s{sStr}, 8, 3")
        ops.append(f"s_cselect_b64 s[{sM}:{sM+1}], -1, 0")
        ops.append(f"s_mul_i32 s{sStr}, s{sStr}, 18432")
        ops.append(f"s_mul_i32 s{st1}, s{sStr}, s{sPar}")
        ops.append(f"s_add_u32 s{sSrc}, s{st0}, s{st1}")
        ops.append(f"s_lshl_b32 s{sStr}, s{sStr}, 1")
        ops.append(f"v_cndmask_b32 v{vDma}, v{vDmaQ}, v{vDmaF}, s[{sM}:{sM+1}]")
        return ops

    def dma_piece(g, i):
        slot = g % 6
        return [f"s_add_u32 m0, s{sLdsW}, {slot*STG + i*2048}",
                f"s_nop 0",
                ("VM", f"buffer_load_dwordx4 v{vDma}, {sr(sF,4)}, s{sSrc} offen lds", ("dma", g)),
                f"s_add_u32 s{sSrc}, s{sSrc}, s{sStr}"]
    def sdma_piece(j, i):
        return [f"s_add_u32 m0, s{sLdsW}, {j*STG + i*2048}",
                f"s_nop 0",
                ("VM", f"buffer_load_dwordx4 v{vDma}, {sr(sF,4)}, s{sSrc} offen lds", None),
                f"s_add_u32 m0, s{sLdsW}, {(3+j)*STG + i*2048 - 64}",
                f"s_nop 0",
                ("VM", f"buffer_load_dwordx4 v{vDma}, {sr(sF,4)}, s{sSrc} offen offset:64 lds", ("sdma", j)),
                f"s_add_u32 s{sSrc}, s{sSrc}, s{sStr}"]

    def emit(o):
        if isinstance(o, tuple):
            if o[0] == "VM":
                vt.issue(o[1], o[2])
        else:
            a.e(o)

    def xload(s):
        ops = []
        for rt in range(2):
            ops.append(("VM", f"buffer_load_dwordx4 {xfrag(rt,s)}, v{vTmp}, {sr(sXN,4)}, s{st2 if rt==0 else sLoop} offen offset:{(s%4)*1024}", ("x", s)))
        if s % 4 == 3:
            ops.append(f"s_add_u32 s{st2}, s{st2}, 4096")
            ops.append(f"s_add_u32 s{sLoop}, s{sLoop}, 4096")
        return ops

    for o in next_fetch(): a.e(o)
    for i in range(6):
        for o in sdma_piece(0, i): emit(o)
    if 'coop' in OPT:
        npc = -(-(288 << lm) // 128)
        a.e(f"s_and_b32 s{st0}, s2, {(8>>lm)-1}")
        a.e(f"s_mul_i32 s{st0}, s{st0}, {294912 << lm}")
        a.e(f"s_lshr_b32 s{st1}, s2, 3")
        a.e(f"s_lshl_b32 s{st1}, s{st1}, 2")
        a.e(f"s_add_u32 s{st1}, s{st1}, s{sw}")
        a.e(f"s_mul_i32 s{st1}, s{st1}, {npc*1024}")
        a.e(f"s_add_u32 s{st0}, s{st0}, s{st1}")
        a.e(f"v_lshlrev_b32 v{vTmp}, 4, v{vLane}")
        for i in range(npc):
            vt.issue(f"buffer_load_dwordx4 {vr(PFD,4)}, v{vTmp}, {sr(sXN,4)}, s{st0} offen", None)
            a.e(f"s_add_u32 s{st0}, s{st0}, 1024")
    a.e(f"s_lshl_b32 s{st2}, s{smt}, 3")
    a.e(f"s_lshl_b32 s{st1}, s{sw}, 1")
    a.e(f"s_add_u32 s{st2}, s{st2}, s{st1}")
    a.e(f"s_mul_i32 s{st2}, s{st2}, 36864")
    a.e(f"s_add_u32 s{sLoop}, s{st2}, 36864")
    a.e(f"v_lshlrev_b32 v{vTmp}, 4, v{vLane}")
    for s in range(4):
        for o in xload(s): emit(o)
    a.e(f"v_lshrrev_b32 v{vTmp2}, 4, v{vLane}")
    a.e(f"v_and_b32 v{vTmp2}, 1, v{vTmp2}")
    a.e(f"v_mul_u32_u24 v{vRd[0][0]}, {12288+32}, v{vTmp2}")
    a.e(f"v_lshrrev_b32 v{vTmp2}, 5, v{vLane}")
    a.e(f"v_lshl_add_u32 v{vRd[0][0]}, v{vTmp2}, 9, v{vRd[0][0]}")
    a.e(f"v_bfe_u32 v{vTmp2}, v{vLane}, 2, 2")
    a.e(f"v_lshl_add_u32 v{vRd[0][0]}, v{vTmp2}, 6, v{vRd[0][0]}")
    a.e(f"v_and_b32 v{vTmp2}, 3, v{vLane}")
    a.e(f"v_lshl_add_u32 v{vRd[0][0]}, v{vTmp2}, 3, v{vRd[0][0]}")
    a.e(f"v_xor_b32 v{vRd[0][1]}, 32, v{vRd[0][0]}")
    a.e(f"v_add_u32 v{vRd[1][0]}, {3*STG}, v{vRd[0][0]}")
    a.e(f"v_add_u32 v{vRd[1][1]}, {3*STG}, v{vRd[0][1]}")
    a.e(f"v_bfe_u32 v{vTmp2}, v{vLane}, 4, 1")
    a.e(f"v_mul_u32_u24 v{vHst}, 147456, v{vTmp2}")
    a.e(f"v_lshrrev_b32 v{vTmp2}, 5, v{vLane}")
    a.e(f"v_lshl_add_u32 v{vHst}, v{vTmp2}, 8, v{vHst}")
    a.e(f"v_and_b32 v{vTmp2}, 15, v{vLane}")
    a.e(f"v_lshl_add_u32 v{vHst}, v{vTmp2}, 4, v{vHst}")
    a.e(f"v_and_b32 v{vTmp2}, 31, v{vLane}")
    a.e(f"v_mul_u32_u24 v{vQst}, 3456, v{vTmp2}")
    a.e(f"v_lshrrev_b32 v{vTmp2}, 5, v{vLane}")
    a.e(f"v_lshl_add_u32 v{vQst}, v{vTmp2}, 3, v{vQst}")
    a.e(f"v_mov_b32 v{vC1}, 0x{f2u(GC1):08x}")
    a.e(f"v_lshlrev_b32 v{vPf}, 4, v{vLane}")
    a.e(f"s_lshl_b32 s{st0}, s{smt}, 4")
    a.e(f"s_lshl_b32 s{st1}, s{sw}, 2")
    a.e(f"s_add_u32 s{st0}, s{st0}, s{st1}")
    a.e(f"s_mul_i32 s{sHoff}, s{st0}, 147456")
    a.e(f"s_lshl_b32 s{st1}, s{sfb0}, 10")
    a.e(f"s_add_u32 s{sHoff}, s{sHoff}, s{st1}")
    a.e(f"s_add_u32 s{sHoff2}, s{sHoff}, {2*147456}")
    a.e(f"s_lshl_b32 s{st0}, s{smt}, 8")
    a.e(f"s_lshl_b32 s{st1}, s{sw}, 6")
    a.e(f"s_add_u32 s{st0}, s{st0}, s{st1}")
    a.e(f"s_mul_i32 s{sQrow}, s{st0}, 3456")
    stamp()
    vt.wait_tag(("sdma", 0))
    a.e("s_barrier")
    stamp()
    def rd(par, s, c, half=None):
        if 'noread' in OPT: return
        w = WF + 8 * (s % 4) + 4 * c
        off = (s // 12) * STG + (s % 12) * 1024
        if half in (None, 0):
            lt.issue(f"ds_read_b64_tr_b16 {vr(w,2)}, v{vRd[par][c]} offset:{off}", None)
        if half in (None, 1):
            lt.issue(f"ds_read_b64_tr_b16 {vr(w+2,2)}, v{vRd[par][c]} offset:{off+256}", ("w", s % 4, c))

    def epiF(st_, pf=False):
        ops = []
        k = 0
        for c in range(2):
            for rt in range(2):
                P = ACC[st_][c][rt]; Tt = T[k % 2]; k += 1
                for r in range(8): ops.append(f"v_mul_f32 v{Tt+r}, v{P+r}, v{P+r}")
                for r in range(8): ops.append(f"v_mul_f32 v{P+8+r}, v{P+r}, v{P+8+r}")
                for r in range(8): ops.append(f"v_fmaak_f32 v{Tt+r}, v{vC1}, v{Tt+r}, 0x{f2u(GC0):08x}")
                for r in range(8): ops.append(f"v_mul_f32 v{Tt+r}, v{Tt+r}, v{P+r}")
                for r in range(8): ops.append(f"v_exp_f32 v{Tt+r}, v{Tt+r}")
                for r in range(8): ops.append(f"v_add_f32 v{Tt+r}, 1.0, v{Tt+r}")
                for r in range(8): ops.append(f"v_rcp_f32 v{Tt+r}, v{Tt+r}")
                for r in range(8): ops.append(f"v_mul_f32 v{P+8+r}, v{P+8+r}, v{Tt+r}")
                for r in range(4): ops.append(f"v_cvt_pk_bf16_f32 v{Tt+r}, v{P+8+2*r}, v{P+9+2*r}")
                so = sHoff if rt == 0 else sHoff2
                ops.append(("VM", f"buffer_store_dwordx4 {vr(Tt,4)}, v{vHst}, {sr(sH,4)}, s{so} offen offset:{c*512}{STF}", None))
        ops.append(f"s_add_u32 s{sHoff}, s{sHoff}, 1024")
        ops.append(f"s_add_u32 s{sHoff2}, s{sHoff2}, 1024")
        if pf and 'nopfd' not in OPT:
            n = len(ops)
            for i in range(4):
                ops.insert((n * (2*i+1)) // 9, ("VM", f"buffer_load_dwordx4 {vr(PFD,4)}, v{vPf}, {sr(sD,4)}, s{sPf} offen offset:{i*1024}", None))
            ops.append(f"s_add_u32 s{sPf}, s{sPf}, 4096")
        return ops

    def epiQ(st_, nch):
        ops = []
        k = 0
        for c in range(nch):
            for rt in range(2):
                P = ACC[st_][c][rt]; Tt = T[k % 2]; k += 1
                for r in range(8): ops.append(f"v_cvt_pk_bf16_f32 v{Tt+r}, v{P+2*r}, v{P+2*r+1}")
                for rg in range(4):
                    so = [[sQoG, sQoU], [sQoG2, sQoU2]][rt][rg // 2]
                    ops.append(("VM", f"buffer_store_dwordx2 {vr(Tt+2*rg,2)}, v{vQst}, {sr(sQKV,4)}, s{so} offen offset:{c*32+(rg%2)*16}", None))
        return ops

    def setq(g, u):
        a.e(f"s_add_u32 s{sQoG}, s{sQrow}, s{g}")
        a.e(f"s_add_u32 s{sQoU}, s{sQrow}, s{u}")
        a.e(f"s_add_u32 s{sQoG2}, s{sQoG}, {32*3456}")
        a.e(f"s_add_u32 s{sQoU2}, s{sQoU}, {32*3456}")


    def cost(o):
        t = o[1] if isinstance(o, tuple) else o
        if t.startswith("v_exp") or t.startswith("v_rcp"): return 2.0
        if t.startswith("s_"): return 0.5
        return 1.0

    def srd_(s, b, c, h):
        w = WF + 16 * (s % 2) + 8 * b + 4 * c + 2 * h
        off = (s // 12) * STG + (s % 12) * 1024 + 256 * h
        lt.issue(f"ds_read_b64_tr_b16 {vr(w,2)}, v{vRd[b][c]} offset:{off}", ("sw", s % 2, b, c) if h == 1 else None)

    def superblock():
        extra = []
        for s in range(4, 12): extra.append(xload(s))
        for i in range(6): extra.append(sdma_piece(1, i))
        for s in range(12, 24): extra.append(xload(s))
        for i in range(6): extra.append(sdma_piece(2, i))
        for s in range(24, 36): extra.append(xload(s))
        extra.append(next_fetch() + next_fetch())
        for b in range(2):
            for c in range(2):
                for h in range(2): srd_(0, b, c, h)
        for s in range(36):
            rq = [(s + 1, b, c, h) for b in range(2) for c in range(2) for h in range(2)] if s < 35 else []
            vt.wait_tag(("x", s))
            for m in range(8):
                b, c, rt = m // 4, (m // 2) % 2, m % 2
                if rt == 0: lt.wait_tag(("sw", s % 2, b, c))
                P = ACC[b][c][rt]
                cc = "0" if s == 0 else vr(P, 16)
                a.e(f"v_mfma_f32_32x32x16_bf16 {vr(P,16)}, {vr(WF+16*(s%2)+8*b+4*c,4)}, {xfrag(rt,s)}, {cc}")
                if rq: srd_(*rq.pop(0))
                if extra and m % 2 == 0:
                    for o in extra.pop(0): emit(o)
            if s in (10, 22):
                j = 1 if s == 10 else 2
                for g in extra:
                    for o in g: assert not (isinstance(o, tuple) and o[2] == ("sdma", j))
                vt.wait_tag(("sdma", j))
                a.e("s_barrier")
                if s == 22:
                    assert not extra
                    for i in range(6): extra.append(dma_piece(6, i))
            if s == 27:
                a.e("s_barrier")
                for i in range(6): extra.append(dma_piece(7, i))
        assert not extra

    def body(blk, pend, nch=2, last=False, next_nch=2, head=False):
        par = blk % 2
        pend = list(pend)
        nm = 2 * nch
        totc = sum(cost(o) for o in pend)
        ngaps = 34 * nm
        done_c = 0.0; gap_i = 0
        dq = []
        for s in range(36):
            stg = s // 12; ks = s % 12
            g = 3 * blk + stg
            sn = s + 3
            rq = []
            if sn < 36:
                for c in range(nch):
                    for h in range(2): rq.append((par, sn, c, h))
            elif not last:
                for c in range(next_nch):
                    for h in range(2): rq.append((par ^ 1, sn - 36, c, h))
            for m in range(nm):
                c = m // 2; rt = m % 2
                if rt == 0: lt.wait_tag(("w", s % 4, c))
                P = ACC[par][c][rt]
                cc = "0" if s == 0 else vr(P, 16)
                a.e(f"v_mfma_f32_32x32x16_bf16 {vr(P,16)}, {vr(WF+8*(s%4)+4*c,4)}, {xfrag(rt,s)}, {cc}")
                nr = -(-len(rq) // (nm - m))
                for _ in range(nr): rd(*rq.pop(0))
                if s >= 1:
                    gap_i += 1
                    while pend and done_c < totc * gap_i / ngaps:
                        o = pend.pop(0); done_c += cost(o); emit(o)
                if dq and m % 2 == 1:
                    for o in dq.pop(0): emit(o)
            if ks == 1 and not (last and stg == 2):
                assert not dq
                vt.wait_tag(("dma", g + 1))
                a.e("s_barrier")
                if g + 5 <= 17 and g + 5 >= 12:
                    if (g + 5) % 3 == 0: dq.append(next_fetch())
                    for i in range(6): dq.append(dma_piece(g + 5, i))
        assert not pend and not dq, (len(pend), len(dq))

    superblock()
    stamp()
    vt.wait_tag(("dma", 7))
    a.e("s_barrier")
    for s in range(3):
        for c in range(2): rd(0, s, c)
    dq = []
    for g in range(8, 12):
        if g == 9: dq.append(next_fetch())
        for i in range(6): dq.append(dma_piece(g, i))
    ep = epiF(0)
    for k, o in enumerate(ep):
        emit(o)
        if dq and k % 10 == 5:
            for x in dq.pop(0): emit(x)
    assert not dq
    stamp()
    body(2, epiF(1, True))
    stamp()
    body(3, epiF(0, True))
    stamp()
    body(4, epiF(1, True))
    stamp()
    snap = lt.snapshot(); vsnap = (vt.n, dict(vt.tags), vt.done)
    setq(sQ1G, sQ1U)
    a.e(f"s_cmp_eq_u32 s{sNQ}, 2")
    a.e("s_cbranch_scc1 K1_tailB2")
    a.e(f"s_cmp_eq_u32 s{sNQ}, 3")
    a.e("s_cbranch_scc1 K1_B3")
    body(5, epiF(0), nch=1, last=True)
    a.e("s_branch K1_tailS")
    a.lab("K1_B3")
    lt.restore(snap); vt.n, vt.tags, vt.done = vsnap[0], dict(vsnap[1]), vsnap[2]
    body(5, epiQ(0, 2), nch=1, last=True)
    setq(sQ2G, sQ2U)
    a.lab("K1_tailS")
    dump()
    a.e("s_nop 15")
    for o in epiQ(1, 1): emit(o)
    a.e("s_endpgm")
    a.lab("K1_tailB2")
    dump()
    a.e("s_nop 15")
    for o in epiQ(0, 2): emit(o)
    a.lab("K1_done")
    a.e("s_endpgm")
    d = f""".p2align 6
.amdhsa_kernel gemm1_kernel
  .amdhsa_next_free_vgpr {NVA+256}
  .amdhsa_next_free_sgpr 90
  .amdhsa_accum_offset {NVA}
  .amdhsa_group_segment_fixed_size 0
  .amdhsa_kernarg_size 80
  .amdhsa_user_sgpr_count 2
  .amdhsa_user_sgpr_kernarg_segment_ptr 1
  .amdhsa_system_sgpr_workgroup_id_x 1
.end_amdhsa_kernel
"""
    return a.text(), d
```

```python
from gen_common import *

def gen_k3(OPT=set()):
    STF = stf(OPT, 3)
    a = A()
    kheader(a, "gemm2_kernel")
    ACC = 0
    WF = 72
    NH = 6
    HF = 108
    vLane, vRdA, vRdB, vTmp, vTmp2, vHo = 156, 157, 158, 159, 160, 161
    vDma = [162, 163, 164, 165, 166]
    vAh = 167
    AQ = 168
    AK = 178
    AL = 218
    AO = 222
    AT = 242
    AX = 244
    NV = 248
    STG = 36864
    ATT = 3 * STG
    NS = 3
    sWd, sH, sP, sQKV, sO = 12, 16, 20, 24, 28
    (sw, smt, snt, sks, srg, skh, st0, st1, st2, sSrc, sH0, sH1, sPo, sQ5, sRow, sOo, sSrcEnd, sHEnd) = range(32, 50)

    a.e("s_cmp_ge_u32 s2, 256")
    a.e("s_cbranch_scc1 K3_done")
    SP = Stamper(a, 'stamp3' in OPT, 246, 247, vLane, sw, region=1)
    a.e("s_load_dwordx2 s[4:5], s[0:1], 48")
    a.e("s_load_dwordx2 s[10:11], s[0:1], 72")
    a.e(f"v_and_b32 v{vLane}, 63, v0")
    a.e(f"v_lshrrev_b32 v{vTmp}, 6, v0")
    a.e("s_nop 0")
    a.e(f"v_readfirstlane_b32 s{sw}, v{vTmp}")
    a.e(f"s_and_b32 s{st0}, s2, 7")
    a.e(f"s_lshr_b32 s{st1}, s2, 3")
    a.e(f"s_lshr_b32 s{sks}, s{st0}, 1")
    a.e(f"s_and_b32 s{st0}, s{st0}, 1")
    a.e(f"s_lshl_b32 s{smt}, s{st0}, 3")
    a.e(f"s_lshr_b32 s{st2}, s{st1}, 2")
    a.e(f"s_add_u32 s{smt}, s{smt}, s{st2}")
    a.e(f"s_and_b32 s{snt}, s{st1}, 3")
    a.e(f"s_and_b32 s{srg}, s{sw}, 3")
    a.e(f"s_lshr_b32 s{skh}, s{sw}, 2")
    a.e("s_waitcnt lgkmcnt(0)")
    srd(a, sWd, 4, 4608*1152)
    srd(a, sH, 10, 2048*9216, add=L.H)
    srd(a, sP, 10, 4*2048*576*4, add=L.PART)
    srd(a, sQKV, 10, 2048*3456, add=L.QKV)
    srd(a, sO, 10, 2048*1152, add=L.O)
    a.e(f"s_add_u32 s{sQ5}, s{srg}, 32")
    for i in range(5):
        if i < 4:
            a.e(f"s_add_u32 s{st0}, s{sw}, {8*i}")
        else:
            a.e(f"s_mov_b32 s{st0}, s{sQ5}")
        a.e(f"s_cmp_ge_u32 s{st0}, 18")
        a.e(f"s_cselect_b32 s{st1}, 18, 0")
        a.e(f"s_cselect_b32 s{st2}, {576*1152}, 0")
        a.e(f"s_sub_u32 s{st0}, s{st0}, s{st1}")
        a.e(f"s_lshl_b32 s{st0}, s{st0}, 6")
        a.e(f"v_add_u32 v{vTmp}, s{st0}, v{vLane}")
        a.e(f"v_mul_u32_u24 v{vTmp2}, 3641, v{vTmp}")
        a.e(f"v_lshrrev_b32 v{vTmp2}, 16, v{vTmp2}")
        a.e(f"v_mul_u32_u24 v{vDma[i]}, {1152-18*16}, v{vTmp2}")
        a.e(f"v_lshl_add_u32 v{vDma[i]}, v{vTmp}, 4, v{vDma[i]}")
        a.e(f"v_add_u32 v{vDma[i]}, s{st2}, v{vDma[i]}")
    rotsh = 1 if 'rot' in OPT else 0
    a.e(f"s_mul_i32 s{sSrc}, s{sks}, {1152*1152}")
    a.e(f"s_mul_i32 s{st0}, s{snt}, 288")
    a.e(f"s_add_u32 s{sSrc}, s{sSrc}, s{st0}")
    a.e(f"s_add_u32 s{sSrcEnd}, s{sSrc}, {9*64*1152}")
    a.e(f"s_mul_i32 s{st0}, s{snt}, {rotsh*2*64*1152}")
    a.e(f"s_add_u32 s{sSrc}, s{sSrc}, s{st0}")
    a.e(f"s_lshl_b32 s{st1}, s{sw}, 10")
    a.e(f"s_lshl_b32 s{sQ5}, s{sQ5}, 10")

    vt = VmTracker(a)
    lt = LgkmTracker(a)
    def emit(o):
        if isinstance(o, tuple):
            if o[0] == "VM":
                if 'k3noh' in OPT and o[2] and o[2][0] == 'h': return
                if 'k3nodma' in OPT and o[2] and o[2][0] == 'dma': return
                if 'k3noat' in OPT and o[2] and o[2][0] == 'astage': return
                vt.issue(o[1], o[2])
            elif o[0] == "WAIT": vt.wait_tag(o[1])
            elif o[0] == "DS": lt.issue(o[1], o[2])
            elif o[0] == "LWAIT": lt.wait_tag(o[1])
        else: a.e(o)
    sEx = 50
    a.e(f"s_cmp_eq_u32 s{skh}, 0")
    a.e(f"s_cselect_b64 s[{sEx}:{sEx+1}], -1, 0")
    def dma_stage(stage):
        slot = stage % NS
        groups = []
        for i in range(5):
            g = []
            if i < 4:
                g.append(f"s_add_u32 m0, s{st1}, {slot*STG + i*8192}")
                g.append("s_nop 0")
            else:
                g.append(f"s_add_u32 m0, s{sQ5}, {slot*STG}")
                g.append(f"s_mov_b64 exec, s[{sEx}:{sEx+1}]")
            g.append(("VM", f"buffer_load_dwordx4 v{vDma[i]}, {sr(sWd,4)}, s{sSrc} offen lds", ("dma", stage)))
            if i == 4:
                g.append("s_mov_b64 exec, -1")
                g.append(f"s_add_u32 s{sSrc}, s{sSrc}, {64*1152}")
                g.append(f"s_cmp_ge_u32 s{sSrc}, s{sSrcEnd}")
                g.append(f"s_cselect_b32 s{st0}, {9*64*1152}, 0")
                g.append(f"s_sub_u32 s{sSrc}, s{sSrc}, s{st0}")
            groups.append(g)
        return groups
    a.e(f"s_lshl_b32 s{st0}, s{smt}, 3")
    a.e(f"s_lshl_b32 s{st2}, s{srg}, 1")
    a.e(f"s_add_u32 s{st0}, s{st0}, s{st2}")
    a.e(f"s_mul_i32 s{sH0}, s{st0}, 147456")
    a.e(f"s_mul_i32 s{st2}, s{sks}, {36*1024}")
    a.e(f"s_add_u32 s{sH0}, s{sH0}, s{st2}")
    a.e(f"s_mul_i32 s{st2}, s{skh}, {18*1024}")
    a.e(f"s_add_u32 s{sH0}, s{sH0}, s{st2}")
    a.e(f"s_add_u32 s{sHEnd}, s{sH0}, {18*1024}")
    a.e(f"s_mul_i32 s{st2}, s{snt}, {rotsh*4*1024}")
    a.e(f"s_add_u32 s{sH0}, s{sH0}, s{st2}")
    a.e(f"s_add_u32 s{sH1}, s{sH0}, 147456")
    a.e(f"s_lshl_b32 s{st2}, s{sks}, 7")
    a.e(f"s_add_u32 s{st0}, s{st0}, s{st2}")
    a.e(f"s_mul_i32 s{sPo}, s{st0}, {36*1024}")
    a.e(f"s_mul_i32 s{st2}, s{snt}, {9*1024}")
    a.e(f"s_add_u32 s{sPo}, s{sPo}, s{st2}")
    a.e(f"v_lshlrev_b32 v{vHo}, 4, v{vLane}")
    def hload(step):
        ops = []
        for mi in range(2):
            r = HF + ((step % NH) * 2 + mi) * 4
            ops.append(("VM", f"buffer_load_dwordx4 {vr(r,4)}, v{vHo}, {sr(sH,4)}, s{sH0 if mi==0 else sH1} offen offset:{(step%2)*1024}", ("h", step)))
        if step % 2 == 1:
            ops.append(f"s_add_u32 s{sH0}, s{sH0}, 2048")
            ops.append(f"s_cmp_ge_u32 s{sH0}, s{sHEnd}")
            ops.append(f"s_cselect_b32 s{st2}, {18*1024}, 0")
            ops.append(f"s_sub_u32 s{sH0}, s{sH0}, s{st2}")
            ops.append(f"s_add_u32 s{sH1}, s{sH0}, 147456")
        return ops
    for g in dma_stage(0):
        for o in g: emit(o)
    for st in range(2):
        for o in hload(st): emit(o)
    pro = []
    pro += dma_stage(1)
    for st in range(2, NH - 2): pro.append(hload(st))
    at = []
    E = at.append
    a.e(f"s_lshl_b32 s{sRow}, s2, 3")
    a.e(f"s_sub_u32 s{sOo}, s{sRow}, 14")
    a.e(f"s_mul_i32 s{sOo}, s{sOo}, 3456")
    a.e(f"s_add_u32 s{sOo}, s{sOo}, 1152")
    for j in range(7):
        g = []
        g.append(f"s_add_u32 s{st0}, s{sw}, {8*j}")
        g.append(f"s_lshl_b32 s{st2}, s{st0}, 6")
        g.append(f"v_add_u32 v{AT}, s{st2}, v{vLane}")
        g.append(f"v_mul_u32_u24 v{AT+1}, 7282, v{AT}")
        g.append(f"v_lshrrev_b32 v{AT+1}, 20, v{AT+1}")
        g.append(f"v_mul_u32_u24 v{AT+1}, {3456-144*16}, v{AT+1}")
        g.append(f"v_lshl_add_u32 v{AT+1}, v{AT}, 4, v{AT+1}")
        g.append(f"v_add_u32 v{AT+1}, s{sOo}, v{AT+1}")
        g.append(f"s_lshl_b32 s{st0}, s{st0}, 10")
        g.append(f"s_add_u32 m0, s{st0}, {ATT}")
        if j == 6:
            g.append(f"s_cmp_lt_u32 s{sw}, 2")
            g.append(f"s_cselect_b64 exec, -1, 0")
        else:
            g.append("s_nop 0")
        g.append(("VM", f"buffer_load_dwordx4 v{AT+1}, {sr(sQKV,4)}, 0 offen lds", ("astage",)))
        if j == 6: g.append("s_mov_b64 exec, -1")
        pro.append(g)
    a.e(f"s_add_u32 s{sRow}, s{sRow}, s{sw}")
    a.e(f"v_and_b32 v{AX}, 31, v{vLane}")
    a.e(f"v_mul_u32_u24 v{AX}, 36, v{AX}")
    a.e(f"s_mul_i32 s{st0}, s{sRow}, 3456")
    a.e(f"v_add_u32 v{AX+1}, s{st0}, v{AX}")
    a.e(f"v_lshrrev_b32 v{vAh}, 5, v{vLane}")
    def qload(dst, voff, tag):
        return [("VM", f"buffer_load_dwordx4 {vr(dst,4)}, v{voff}, {sr(sQKV,4)}, 0 offen", None),
                ("VM", f"buffer_load_dwordx4 {vr(dst+4,4)}, v{voff}, {sr(sQKV,4)}, 0 offen offset:16", None),
                ("VM", f"buffer_load_dword v{dst+8}, v{voff}, {sr(sQKV,4)}, 0 offen offset:32", tag)]
    pro.append(qload(AQ, AX+1, ("q",)))
    E(f"s_add_u32 s{sOo}, s{sw}, 14")
    E(f"s_mul_i32 s{sOo}, s{sOo}, 2304")
    E(f"s_add_u32 s{sOo}, s{sOo}, {ATT}")
    E(f"v_mul_u32_u24 v{AT}, {8*2304}, v{vAh}")
    E(f"v_sub_u32 v{AT}, v{AX}, v{AT}")
    E(f"v_add_u32 v{AT}, s{sOo}, v{AT}")
    E(f"s_mul_i32 s{sOo}, s{sRow}, 1152")
    def lload(dst, i, part, tag):
        E(f"v_add_u32 v{AT+1}, {(-2*2304*i + part*1152) & 0xffffffff}, v{AT}")
        for d in range(4):
            E(("DS", f"ds_read2_b32 {vr(dst+2*d,2)}, v{AT+1} offset0:{2*d} offset1:{2*d+1}", None))
        E(("DS", f"ds_read_b32 v{dst+8}, v{AT+1} offset:32", tag))
    for i in range(4): lload(AK + 10*i, i, 0, ("k", i))
    E(("WAIT", ("q",)))
    E(("LWAIT", ("k", 3)))
    for i in range(4): E(f"v_dot2_f32_bf16 v{AL+i}, v{AQ}, v{AK+10*i}, 0")
    for d in range(1, 9):
        for i in range(4): E(f"v_dot2_f32_bf16 v{AL+i}, v{AQ+d}, v{AK+10*i+d}, v{AL+i}")
    E("s_nop 3")
    for i in range(4): lload(AK + 10*i, i, 1, ("v", i))
    sc = (18 ** -0.5) * math.log2(math.e)
    E(f"v_lshlrev_b32 v{AT+1}, 3, v{vAh}")
    E(f"v_sub_u32 v{AT+1}, s{sRow}, v{AT+1}")
    E(f"v_mov_b32 v{AT}, 0x{f2u(-1e9*math.log2(math.e)):08x}")
    for i in range(4): E(f"v_mul_f32 v{AL+i}, 0x{f2u(sc):08x}, v{AL+i}")
    for i in range(4):
        E(f"v_cmp_le_i32 vcc, {2*i}, v{AT+1}")
        E("s_nop 1")
        E(f"v_cndmask_b32 v{AL+i}, v{AT}, v{AL+i}, vcc")
    E(f"v_max_f32 v{AT}, v{AL}, v{AL+1}")
    E(f"v_max3_f32 v{AT}, v{AT}, v{AL+2}, v{AL+3}")
    E(f"v_mov_b32 v{AT+1}, v{AT}")
    E("s_nop 1")
    E(f"v_permlane32_swap_b32 v{AT}, v{AT+1}")
    E("s_nop 1")
    E(f"v_max_f32 v{AT}, v{AT}, v{AT+1}")
    for i in range(4): E(f"v_sub_f32 v{AL+i}, v{AL+i}, v{AT}")
    for i in range(4): E(f"v_exp_f32 v{AL+i}, v{AL+i}")
    E("s_nop 0")
    E(f"v_add_f32 v{AT}, v{AL}, v{AL+1}")
    E(f"v_add_f32 v{AT+1}, v{AL+2}, v{AL+3}")
    E(f"v_add_f32 v{AT}, v{AT}, v{AT+1}")
    E(f"v_mov_b32 v{AT+1}, v{AT}")
    E("s_nop 1")
    E(f"v_permlane32_swap_b32 v{AT}, v{AT+1}")
    E("s_nop 1")
    E(f"v_add_f32 v{AT}, v{AT}, v{AT+1}")
    E(f"v_rcp_f32 v{AT}, v{AT}")
    E("s_nop 0")
    for i in range(4): E(f"v_mul_f32 v{AL+i}, v{AL+i}, v{AT}")
    E(("LWAIT", ("v", 3)))
    for dd in range(9):
        for i in range(4):
            E(f"v_lshlrev_b32 v{AQ+i}, 16, v{AK+10*i+dd}")
            E(f"v_and_b32 v{AQ+4+i}, 0xffff0000, v{AK+10*i+dd}")
        E(f"v_mul_f32 v{AO+2*dd}, v{AL}, v{AQ}")
        E(f"v_mul_f32 v{AO+2*dd+1}, v{AL}, v{AQ+4}")
        for i in range(1, 4):
            E(f"v_fmac_f32 v{AO+2*dd}, v{AL+i}, v{AQ+i}")
            E(f"v_fmac_f32 v{AO+2*dd+1}, v{AL+i}, v{AQ+4+i}")
    E(f"v_mov_b32 v{AO+18}, 0")
    E(f"v_mov_b32 v{AO+19}, 0")
    E("s_nop 1")
    for d in range(10): E(f"v_permlane32_swap_b32 v{AO+d}, v{AO+10+d}")
    E("s_nop 1")
    for d in range(10): E(f"v_add_f32 v{AO+d}, v{AO+d}, v{AO+10+d}")
    for d in range(5): E(f"v_cvt_pk_bf16_f32 v{AQ+d}, v{AO+2*d}, v{AO+2*d+1}")
    E(f"v_mul_u32_u24 v{AT}, 20, v{vAh}")
    E(f"v_add_u32 v{AX}, v{AX}, v{AT}")
    E(f"v_lshl_add_u32 v{AT}, v{vAh}, 31, v{AX}")
    E(("VM", f"buffer_store_dwordx4 {vr(AQ,4)}, v{AX}, {sr(sO,4)}, s{sOo} offen{STF}", None))
    E(("VM", f"buffer_store_dword v{AQ+4}, v{AT}, {sr(sO,4)}, s{sOo} offen offset:16{STF}", None))
    a.e(f"v_lshrrev_b32 v{vTmp}, 5, v{vLane}")
    a.e(f"v_lshlrev_b32 v{vTmp}, 4, v{vTmp}")
    a.e(f"v_bfe_u32 v{vTmp2}, v{vLane}, 4, 1")
    a.e(f"v_lshl_add_u32 v{vTmp}, v{vTmp2}, 2, v{vTmp}")
    a.e(f"v_bfe_u32 v{vTmp2}, v{vLane}, 2, 2")
    a.e(f"v_add_u32 v{vTmp}, v{vTmp}, v{vTmp2}")
    a.e(f"v_mul_u32_u24 v{vRdA}, 288, v{vTmp}")
    a.e(f"v_and_b32 v{vTmp2}, 3, v{vLane}")
    a.e(f"v_lshl_add_u32 v{vRdA}, v{vTmp2}, 3, v{vRdA}")
    a.e(f"s_mul_i32 s{st0}, s{skh}, 18432")
    a.e(f"v_add_u32 v{vRdA}, s{st0}, v{vRdA}")
    a.e(f"v_add_u32 v{vRdB}, {2*STG}, v{vRdA}")
    SP.stamp()
    vt.wait_tag(("dma", 0))
    a.e("s_barrier")
    SP.stamp()
    PD = 6
    def rd(n):
        step, t = divmod(n, 9)
        stage, stp = divmod(step, 2)
        slot = stage % NS
        base = vRdA if slot < 2 else vRdB
        off = (slot % 2) * STG + stp * 9216 + t * 32
        w = WF + 4 * (n % 9)
        lt.issue(f"ds_read_b64_tr_b16 {vr(w,2)}, v{base} offset:{off}", None)
        lt.issue(f"ds_read_b64_tr_b16 {vr(w+2,2)}, v{base} offset:{off+2304}", ("w", n))
    NF = 18 * 9
    for n in range(PD): rd(n)
    dq = []
    gap = 0
    if 'k3noat' in OPT: at = []
    APG = 3.4
    acred = 0.0
    for n in range(NF):
        step, t = divmod(n, 9)
        stage, stp = divmod(step, 2)
        if n + PD < NF: rd(n + PD)
        if t == 0: vt.wait_tag(("h", step))
        lt.wait_tag(("w", n))
        for mi in range(2):
            acc = ACC + (t * 2 + mi) * 4
            cc = "0" if step == 0 else vr(acc, 4)
            a.e(f"v_mfma_f32_16x16x32_bf16 {vr(acc,4)}, {vr(WF+4*(n%9),4)}, {vr(HF+((step%NH)*2+mi)*4,4)}, {cc}")
        if pro:
            for o in pro.pop(0): emit(o)
        elif dq:
            for o in dq.pop(0): emit(o)
        if stage >= 3:
            acred += APG
            while at and acred >= 1.0:
                emit(at.pop(0)); acred -= 1.0
        if t == 8 and step + NH - 2 < 18:
            dq.append(hload(step + NH - 2))
        bar_n = 11
        if n % 18 == bar_n and stage < 8:
            for g in dq + pro:
                for o in g:
                    assert not (isinstance(o, tuple) and o[2] in (("dma", stage + 1),)), "dma not issued"
                    assert not (stage == 2 and isinstance(o, tuple) and o[2] == ("astage",))
            SP.stamp(lt)
            vt.wait_tag(("dma", stage + 1))
            if stage == 2: vt.wait_tag(("astage",))
            a.e("s_barrier")
            SP.stamp(lt)
            if stage + 2 < 9:
                dq += dma_stage(stage + 2)
    assert not dq
    print("K3: attention ops left after loop:", len(at))
    for o in at:
        if not (isinstance(o, tuple) and o[0] == "GAP"): emit(o)
    SP.stamp(lt)
    a.e("s_waitcnt lgkmcnt(0)")
    a.e("s_barrier")
    a.e("s_nop 4")
    a.e(f"s_xor_b32 s{st0}, s{sw}, 4")
    a.e(f"s_mul_i32 s{st0}, s{st0}, 9216")
    a.e(f"v_add_u32 v{vTmp}, s{st0}, v{vHo}")
    a.e(f"s_mul_i32 s{st0}, s{sw}, 9216")
    a.e(f"v_add_u32 v{vTmp2}, s{st0}, v{vHo}")
    a.e(f"s_cmp_eq_u32 s{skh}, 1")
    a.e("s_cbranch_scc1 K3_kh1")
    for kh in range(2):
        if kh == 1: a.lab("K3_kh1")
        own = list(range(9)) if kh == 0 else list(range(9, 18))
        oth = list(range(9, 18)) if kh == 0 else list(range(9))
        for i, j in enumerate(oth):
            a.e(f"ds_write_b128 v{vTmp}, {vr(ACC+4*j,4)} offset:{i*1024}")
        a.e("s_waitcnt lgkmcnt(0)")
        a.e("s_barrier")
        for i, j in enumerate(own):
            a.e(f"ds_read_b128 {vr(WF+4*i,4)}, v{vTmp2} offset:{i*1024}")
        a.e(f"s_add_u32 s{st0}, s{sPo}, {36*1024}")
        for i, j in enumerate(own):
            a.e(f"s_waitcnt lgkmcnt({8-i})")
            for r in range(4):
                a.e(f"v_add_f32 v{ACC+4*j+r}, v{ACC+4*j+r}, v{WF+4*i+r}")
            t, mi = divmod(j, 2)
            so = sPo if mi == 0 else st0
            if t * 1024 < 4096:
                a.e(f"buffer_store_dwordx4 {vr(ACC+4*j,4)}, v{vHo}, {sr(sP,4)}, s{so} offen offset:{t*1024}{STF}")
            else:
                a.e(f"s_add_u32 s{st2}, s{so}, {t*1024}")
                a.e(f"buffer_store_dwordx4 {vr(ACC+4*j,4)}, v{vHo}, {sr(sP,4)}, s{st2} offen{STF}")
        SP.dump()
        a.e("s_endpgm")
    a.lab("K3_done")
    a.e("s_endpgm")
    return a.text(), kdesc("gemm2_kernel", NV, 100)
```

```python
from gen_common import *

def gen_k4(OPT=set()):
    STF = stf(OPT, 4)
    a = A()
    kheader(a, "final_kernel")
    ACC = 0
    PP = 24
    XR = 72
    WFR = 84
    OFR = 192
    vLane, vL16, vXo, vTmp, vTmp2, vRe, vRo = 208, 209, 210, 211, 212, 213, 214
    NV = 220
    RED = 36864
    sX, sOut, sO, sWO, sP = 12, 16, 20, 24, 28
    (sw, srt, sng, sgrp, skh, st0, st1, st2, sWoff, sPo, sOo) = range(32, 43)
    a.e("s_cmp_ge_u32 s2, 256")
    a.e("s_cbranch_scc1 K4_done")
    SP = Stamper(a, 'stamp4' in OPT, 216, 217, vLane, sw, region=2)
    a.e("s_load_dwordx2 s[4:5], s[0:1], 0")
    a.e("s_load_dwordx2 s[6:7], s[0:1], 56")
    a.e("s_load_dwordx2 s[10:11], s[0:1], 72")
    a.e(f"v_and_b32 v{vLane}, 63, v0")
    a.e(f"v_lshrrev_b32 v{vTmp}, 6, v0")
    a.e("s_nop 0")
    a.e(f"v_readfirstlane_b32 s{sw}, v{vTmp}")
    a.e(f"s_and_b32 s{st0}, s2, 7")
    a.e(f"s_lshr_b32 s{st1}, s2, 3")
    a.e(f"s_and_b32 s{sng}, s{st1}, 3")
    a.e(f"s_lshr_b32 s{st1}, s{st1}, 2")
    a.e(f"s_lshl_b32 s{srt}, s{st0}, 3")
    a.e(f"s_add_u32 s{srt}, s{srt}, s{st1}")
    a.e(f"s_cmp_ge_u32 s{sw}, 3")
    a.e(f"s_cselect_b32 s{skh}, 1, 0")
    a.e(f"s_mul_i32 s{st0}, s{skh}, 3")
    a.e(f"s_sub_u32 s{sgrp}, s{sw}, s{st0}")
    a.e("s_waitcnt lgkmcnt(0)")
    srd(a, sX, 4, 2048*1152)
    srd(a, sOut, 6, 2048*1152)
    srd(a, sO, 10, 2048*1152, add=L.O)
    srd(a, sWO, 10, 576*1152, add=L.WOF)
    srd(a, sP, 10, 4*2048*576*4, add=L.PART)
    a.e(f"v_lshlrev_b32 v{vL16}, 4, v{vLane}")
    vt = VmTracker(a)
    a.e(f"s_mul_i32 s{sOo}, s{srt}, {32*1152}")
    for j in range(6):
        a.e(f"s_add_u32 s{st0}, s{sw}, {6*j}")
        a.e(f"s_lshl_b32 s{st1}, s{st0}, 6")
        a.e(f"v_add_u32 v{vTmp}, s{st1}, v{vLane}")
        a.e(f"v_mul_u32_u24 v{vTmp2}, 3641, v{vTmp}")
        a.e(f"v_lshrrev_b32 v{vTmp2}, 18, v{vTmp2}")
        a.e(f"v_and_b32 v{vRe}, 7, v{vTmp2}")
        a.e(f"v_xor_b32 v{vTmp}, v{vTmp}, v{vRe}")
        a.e(f"v_lshlrev_b32 v{vTmp}, 4, v{vTmp}")
        a.e(f"s_lshl_b32 m0, s{st0}, 10")
        a.e("s_nop 0")
        vt.issue(f"buffer_load_dwordx4 v{vTmp}, {sr(sO,4)}, s{sOo} offen lds", ("o",))
    a.e(f"s_mul_i32 s{st0}, s{sng}, 9")
    a.e(f"s_mul_i32 s{st1}, s{sgrp}, 3")
    a.e(f"s_add_u32 s{st0}, s{st0}, s{st1}")
    a.e(f"s_mul_i32 s{sWoff}, s{st0}, {18*1024}")
    a.e(f"s_mul_i32 s{st1}, s{skh}, {9*1024}")
    a.e(f"s_add_u32 s{sWoff}, s{sWoff}, s{st1}")
    for s in range(9):
        for tt in range(3):
            a.e(f"s_add_u32 s{st1}, s{sWoff}, {tt*18*1024 + s*1024}")
            vt.issue(f"buffer_load_dwordx4 {vr(WFR+(s*3+tt)*4,4)}, v{vL16}, {sr(sWO,4)}, s{st1} offen", ("f", s))
    a.e(f"s_lshl_b32 s{st1}, s{skh}, 8")
    a.e(f"s_lshl_b32 s{st2}, s{srt}, 1")
    a.e(f"s_add_u32 s{st1}, s{st1}, s{st2}")
    a.e(f"s_mul_i32 s{sPo}, s{st1}, 36")
    a.e(f"s_add_u32 s{sPo}, s{sPo}, s{st0}")
    a.e(f"s_lshl_b32 s{sPo}, s{sPo}, 10")
    for k2 in range(2):
        for mi in range(2):
            a.e(f"s_add_u32 s{st1}, s{sPo}, {(k2*128+mi)*36*1024}")
            for tt in range(3):
                vt.issue(f"buffer_load_dwordx4 {vr(PP+k2*24+(tt*2+mi)*4,4)}, v{vL16}, {sr(sP,4)}, s{st1} offen offset:{tt*1024}", ("p",))
    a.e(f"v_and_b32 v{vTmp}, 15, v{vLane}")
    a.e(f"v_mul_u32_u24 v{vXo}, 1152, v{vTmp}")
    a.e(f"v_lshrrev_b32 v{vTmp2}, 4, v{vLane}")
    a.e(f"v_and_b32 v{vRe}, 7, v{vTmp}")
    a.e(f"v_xor_b32 v{vRe}, v{vRe}, v{vTmp2}")
    a.e(f"v_xor_b32 v{vRo}, 4, v{vRe}")
    a.e(f"v_lshl_add_u32 v{vRe}, v{vRe}, 4, v{vXo}")
    a.e(f"v_lshl_add_u32 v{vRo}, v{vRo}, 4, v{vXo}")
    a.e(f"v_lshl_add_u32 v{vXo}, v{vTmp2}, 3, v{vXo}")
    a.e(f"s_cmp_eq_u32 s{skh}, 1")
    a.e(f"s_cselect_b64 vcc, -1, 0")
    a.e(f"v_add_u32 v{vTmp}, 512, v{vRo}")
    a.e(f"v_add_u32 v{vTmp2}, 640, v{vRe}")
    a.e(f"v_cndmask_b32 v{vRe}, v{vRe}, v{vTmp}, vcc")
    a.e(f"v_cndmask_b32 v{vRo}, v{vRo}, v{vTmp2}, vcc")
    a.e(f"s_mul_i32 s{st2}, s{srt}, {32*1152}")
    a.e(f"s_lshl_b32 s{st0}, s{st0}, 5")
    a.e(f"s_add_u32 s{st2}, s{st2}, s{st0}")
    a.e(f"s_add_u32 s{st0}, s{st2}, {16*1152}")
    a.e(f"s_cmp_eq_u32 s{skh}, 0")
    a.e("s_cbranch_scc0 K4_nox")
    for mi in range(2):
        for tt in range(3):
            a.e(f"buffer_load_dwordx2 {vr(XR+(tt*2+mi)*2,2)}, v{vXo}, {sr(sX,4)}, s{st2 if mi==0 else st0} offen offset:{tt*32}")
    a.lab("K4_nox")
    SP.stamp()
    vt.wait_tag(("o",))
    a.e("s_barrier")
    SP.stamp()
    def ord_(s):
        b = OFR + (s % 2) * 8
        base = vRe if s % 2 == 0 else vRo
        a.e(f"ds_read_b128 {vr(b,4)}, v{base} offset:{(s//2)*128}")
        a.e(f"ds_read_b128 {vr(b+4,4)}, v{base} offset:{(s//2)*128+16*1152}")
    ord_(0)
    for s in range(9):
        if s + 1 < 9: ord_(s + 1)
        vt.wait_tag(("f", s))
        a.e(f"s_waitcnt lgkmcnt({2 if s+1<9 else 0})")
        b = OFR + (s % 2) * 8
        for tt in range(3):
            for mi in range(2):
                acc = ACC + (tt*2+mi)*4
                cc = "0" if s == 0 else vr(acc, 4)
                a.e(f"v_mfma_f32_16x16x32_bf16 {vr(acc,4)}, {vr(WFR+(s*3+tt)*4,4)}, {vr(b+4*mi,4)}, {cc}")
    SP.stamp()
    vt.wait_tag(("p",))
    for i in range(24):
        a.e(f"v_add_f32 v{PP+i}, v{PP+i}, v{PP+24+i}")
    a.e(f"s_mul_i32 s{st1}, s{sgrp}, 12288")
    a.e(f"s_add_u32 s{st1}, s{st1}, {RED}")
    a.e(f"v_add_u32 v{vTmp}, s{st1}, v{vL16}")
    a.e(f"s_cmp_eq_u32 s{skh}, 0")
    a.e("s_cbranch_scc1 K4_fin")
    for i in range(6):
        a.e(f"ds_write_b128 v{vTmp}, {vr(ACC+4*i,4)} offset:{i*1024}")
        a.e(f"ds_write_b128 v{vTmp}, {vr(PP+4*i,4)} offset:{6144+i*1024}")
    a.e("s_waitcnt lgkmcnt(0)")
    a.e("s_barrier")
    SP.dump()
    a.e("s_endpgm")
    a.lab("K4_fin")
    a.e("s_barrier")
    FR = WFR
    for i in range(12):
        a.e(f"ds_read_b128 {vr(FR+4*i,4)}, v{vTmp} offset:{i*1024}")
    a.e("s_waitcnt lgkmcnt(0)")
    for i in range(24):
        a.e(f"v_add_f32 v{ACC+i}, v{ACC+i}, v{FR+i}")
        a.e(f"v_add_f32 v{PP+i}, v{PP+i}, v{FR+24+i}")
    def rnd(r0, n, t):
        for i in range(0, n, 2):
            a.e(f"v_cvt_pk_bf16_f32 v{t+i//2}, v{r0+i}, v{r0+i+1}")
        for i in range(0, n, 2):
            a.e(f"v_lshlrev_b32 v{r0+i}, 16, v{t+i//2}")
            a.e(f"v_and_b32 v{r0+i+1}, 0xffff0000, v{t+i//2}")
    rnd(ACC, 24, FR)
    rnd(PP, 24, FR)
    E = PP + 24
    for i in range(24): a.e(f"v_mul_f32 v{E+i}, 0x{f2u(-math.log2(math.e)):08x}, v{PP+i}")
    for i in range(24): a.e(f"v_exp_f32 v{E+i}, v{E+i}")
    for i in range(24): a.e(f"v_add_f32 v{E+i}, 1.0, v{E+i}")
    for i in range(24): a.e(f"v_rcp_f32 v{E+i}, v{E+i}")
    for i in range(24): a.e(f"v_mul_f32 v{PP+i}, v{PP+i}, v{E+i}")
    rnd(PP, 24, FR)
    for i in range(24): a.e(f"v_mul_f32 v{PP+i}, v{PP+i}, v{ACC+i}")
    rnd(PP, 24, FR)
    a.e("s_waitcnt vmcnt(0)")
    for i in range(12):
        a.e(f"v_lshlrev_b32 v{E+2*i}, 16, v{XR+i}")
        a.e(f"v_and_b32 v{E+2*i+1}, 0xffff0000, v{XR+i}")
    for i in range(24): a.e(f"v_add_f32 v{PP+i}, v{PP+i}, v{E+i}")
    for i in range(12): a.e(f"v_cvt_pk_bf16_f32 v{FR+i}, v{PP+2*i}, v{PP+2*i+1}")
    for mi in range(2):
        for tt in range(3):
            a.e(f"buffer_store_dwordx2 {vr(FR+(tt*2+mi)*2,2)}, v{vXo}, {sr(sOut,4)}, s{st2 if mi==0 else st0} offen offset:{tt*32}{STF}")
    SP.dump()
    a.lab("K4_done")
    a.e("s_endpgm")
    return a.text(), kdesc("final_kernel", NV, 100)
```

```python
import os, sys
from gen_common import *
import k0, k1v2, k1v3, k3, k4
OPT = set(os.environ.get('OPT','').split(',')) | {'st1=sc0+sc1'}
def main():
    parts = [k0.gen_k0(OPT), (k1v2 if 'k1v2' in OPT else k1v3).gen_k1(OPT), k3.gen_k3(OPT), k4.gen_k4(OPT)]
    hdr = open("recurrent_scan__sliding_local_dilated__geglu_ffn__prompt.s.ref").read().split("; Override")[0]
    out = hdr
    out += f"; @launch kernel=ln_kernel grid=({k0.K0_GRID},1,1) block=(256,1,1) lds=0\n"
    out += f"; @launch kernel=gemm1_kernel grid=(256,1,1) block=(256,1,1) lds=147456\n"
    out += f"; @launch kernel=gemm2_kernel grid=(256,1,1) block=(512,1,1) lds=162304\n"
    out += f"; @launch kernel=final_kernel grid=(256,1,1) block=(384,1,1) lds=73728\n"
    out += '.amdgcn_target "amdgcn-amd-amdhsa--gfx950"\n.text\n'
    for t, d in parts: out += t
    out += '.section .rodata,"a"\n'
    for t, d in parts: out += d
    dst = sys.argv[1] if len(sys.argv) > 1 else "recurrent_scan__sliding_local_dilated__geglu_ffn__prompt.s"
    open(dst, "w").write(out)
main()
```
